```python
import torch

def _softmax(x, axis=-1):
    return torch.softmax(x, dim=axis)
def _gelu(x):
    return torch.nn.functional.gelu(x, approximate="tanh")
def _silu(x):
    return torch.nn.functional.silu(x)
def _sigmoid(x):
    return torch.sigmoid(x)
def _layernorm(x, axis=-1, eps=1e-5):
    m = x.mean(dim=axis, keepdim=True)
    v = x.var(dim=axis, keepdim=True, unbiased=False)
    return (x - m) / torch.sqrt(v + eps)
def _scatter_add(tgt, idx, src, axis=0):
    return tgt.clone().index_add_(axis, idx, src)
def _segment_sum(src, seg, n):
    out = torch.zeros((n,) + src.shape[1:], dtype=src.dtype)
    return out.index_add_(0, seg, src)
def _pad(x, pw):
    flat = tuple(v for pair in reversed(pw) for v in pair)
    return torch.nn.functional.pad(x, flat)

kernel_name = 'concat_heads__mha_block__spectral_fnet__prompt'

def setup_inputs():

    _w = (lambda a: (lambda t: t.to(torch.bfloat16) if t.is_floating_point() else t)(torch.as_tensor(a)))
    def _A_setup():
        B, S, D, H = 1, 2048, 640, 32
        return {
            "x": _w((lambda *s: torch.randn(*s, dtype=torch.bfloat16) * 0.2)(B, S, D)),
            "wqkv": _w((lambda *s: torch.randn(*s, dtype=torch.bfloat16) * 0.8)(D, 3 * D)),
            "wo": _w((lambda *s: torch.randn(*s, dtype=torch.bfloat16) * 0.2)(D, D)),
        }
    _A_in = _A_setup()

    def _B_setup():
        B, S, D = 1, 2048, 640
        ns = torch.arange(S)[:, None] * torch.arange(S)[None, :]
        nd = torch.arange(D)[:, None] * torch.arange(D)[None, :]
        Ws_re = torch.cos(-2.0 * torch.pi * ns / S).to(float)
        Ws_im = torch.sin(-2.0 * torch.pi * ns / S).to(float)
        Wd_re = torch.cos(-2.0 * torch.pi * nd / D).to(float)
        Wd_im = torch.sin(-2.0 * torch.pi * nd / D).to(float)
        return {
            "x": _w((lambda *s: torch.randn(*s, dtype=torch.bfloat16) * 0.05)(B, S, D)),
            "dft_seq_re": _w(Ws_re),
            "dft_seq_im": _w(Ws_im),
            "dft_hid_re": _w(Wd_re),
            "dft_hid_im": _w(Wd_im),
        }
    _B_in = _B_setup()

    return {
        "A_x": _A_in["x"],
        "A_wqkv": _A_in["wqkv"],
        "A_wo": _A_in["wo"],
        "B_x": _B_in["x"],
        "B_dft_seq_re": _B_in["dft_seq_re"],
        "B_dft_seq_im": _B_in["dft_seq_im"],
        "B_dft_hid_re": _B_in["dft_hid_re"],
        "B_dft_hid_im": _B_in["dft_hid_im"],
    }

def reference(A_x, A_wqkv, A_wo, B_x, B_dft_seq_re, B_dft_seq_im, B_dft_hid_re, B_dft_hid_im):
    def _A_ref(x, wqkv, wo):
        B, S, D = x.shape
        H = 32
        Dh = D // H
        qkv = (lambda x, *d: x.permute(*d))((x @ wqkv).reshape(B, S, 3, H, Dh), 2, 0, 3, 1, 4)
        q, k, v = qkv[0], qkv[1], qkv[2]
        scores = torch.einsum("bhqd,bhkd->bhqk", q, k) * (Dh ** -0.5)
        p = _softmax(scores, axis=-1)
        o = torch.einsum("bhqk,bhkd->bhqd", p, v)
        return (lambda x, *d: x.permute(*d))(o, 0, 2, 1, 3).reshape(B, S, D) @ wo

    def _B_ref(x, dft_seq_re, dft_seq_im, dft_hid_re, dft_hid_im):
        a = torch.einsum("bsd,ed->bse", x, dft_hid_re)
        b = torch.einsum("bsd,ed->bse", x, dft_hid_im)
        y = torch.einsum("ts,bse->bte", dft_seq_re, a) - torch.einsum("ts,bse->bte", dft_seq_im, b)
        return y

    a = _A_ref(A_x, A_wqkv, A_wo)
    b = _B_ref(B_x, B_dft_seq_re, B_dft_seq_im, B_dft_hid_re, B_dft_hid_im)
    return torch.concatenate([a, b], axis=-1)
```

```python
import re


class Asm:
    def __init__(self):
        self.lines = []
        self._uid = 0

    def __call__(self, s):
        for l in s.split("\n"):
            l = l.strip()
            if l:
                self.lines.append("    " + l if not l.endswith(":") else l)

    def label(self, name):
        self.lines.append(name + ":")

    def raw(self, s):
        self.lines.append(s)

    def uid(self, base):
        self._uid += 1
        return f"{base}_{self._uid}"

    def text(self):
        return "\n".join(self.lines) + "\n"


def vr(b, n=1):
    return f"v{b}" if n == 1 else f"v[{b}:{b+n-1}]"


def sr(b, n=1):
    return f"s{b}" if n == 1 else f"s[{b}:{b+n-1}]"


def ar(b, n=1):
    return f"a{b}" if n == 1 else f"a[{b}:{b+n-1}]"


class RegAlloc:
    def __init__(self, start, limit):
        self.next = start
        self.limit = limit
        self.hi = start

    def alloc(self, n=1, align=1):
        if n >= 2 and align < 2:
            align = 2
        b = (self.next + align - 1) // align * align
        self.next = b + n
        assert self.next <= self.limit, f"out of registers: {self.next} > {self.limit}"
        self.hi = max(self.hi, self.next)
        return b

    def mark(self):
        return self.next

    def release(self, m):
        self.next = m


_reg_re = re.compile(r"^(-|abs\()?([vsa])(\d+)\)?$|^(-|abs\()?([vsa])\[(\d+):(\d+)\]\)?$")


def regs_of(op):
    op = op.strip()
    op = op.replace("|", "")
    if op in ("vcc",):
        return {("s", "vcc")}
    if op in ("vcc_lo", "vcc_hi"):
        return {("s", "vcc")}
    if op in ("exec", "exec_lo", "exec_hi"):
        return {("s", "exec")}
    if op == "m0":
        return {("s", "m0")}
    m = _reg_re.match(op)
    if not m:
        return set()
    if m.group(2):
        return {(m.group(2), int(m.group(3)))}
    return {(m.group(5), i) for i in range(int(m.group(6)), int(m.group(7)) + 1)}


TRANS = ("v_exp_f32", "v_log_f32", "v_rcp_f32", "v_rsq_f32", "v_sqrt_f32", "v_sin_f32", "v_cos_f32", "v_exp_f16", "v_rcp_iflag_f32")
NODST_S = ("s_cmp", "s_waitcnt", "s_barrier", "s_nop", "s_branch", "s_cbranch", "s_setprio", "s_endpgm", "s_sleep", "s_bitcmp", "s_setreg", "s_sethalt", "s_trap", "s_icache", "s_dcache")


class Ins:
    def __init__(self, text):
        self.text = text
        t = text.split(";")[0].strip()
        parts = t.split(None, 1)
        self.op = parts[0]
        rest = parts[1] if len(parts) > 1 else ""
        ops = [o.strip() for o in rest.split(",")] if rest else []
        mods = ""
        if ops:
            last = ops[-1].split(None, 1)
        ops = []
        cur = ""
        depth = 0
        for ch in rest:
            if ch == "[":
                depth += 1
            if ch == "]":
                depth -= 1
            if ch == "," and depth == 0:
                ops.append(cur.strip())
                cur = ""
            else:
                cur += ch
        if cur.strip():
            ops.append(cur.strip())
        if ops:
            last = ops[-1].split(None, 1)
            ops[-1] = last[0]
            mods = last[1] if len(last) > 1 else ""
        self.ops = ops
        self.mods = mods
        op = self.op
        self.kind = "other"
        self.w = set()
        self.r = set()
        self.A = self.B = self.C = set()
        R = [regs_of(o) for o in ops]
        allr = set().union(*R) if R else set()
        if op.startswith("v_mfma") or op.startswith("v_smfmac"):
            self.kind = "mfma"
            self.w = R[0]
            self.A, self.B, self.C = R[1], R[2], R[3]
            self.r = R[1] | R[2] | R[3]
            if "32x32x4_2b" in op or "32x32x4bf16" in op:
                self.passes = 16
            elif "32x32" in op:
                self.passes = 8
            elif "16x16x32" in op or "16x16x16" in op:
                self.passes = 4
            else:
                raise ValueError("unknown mfma passes " + op)
        elif op.startswith("v_"):
            self.kind = "valu"
            if op.startswith("v_cmpx"):
                self.w = R[0] | {("s", "exec")}
                self.r = set().union(*R[1:])
            elif op.startswith("v_cmp"):
                self.w = R[0]
                self.r = set().union(*R[1:])
            elif op.startswith("v_permlane32_swap") or op.startswith("v_permlane16_swap"):
                self.w = R[0] | R[1]
                self.r = R[0] | R[1]
            elif op.startswith(("v_add_co", "v_sub_co", "v_addc_co", "v_subb_co", "v_subrev_co", "v_mad_u64_u32")):
                self.w = R[0] | R[1]
                self.r = set().union(*R[2:])
            elif op == "v_nop":
                pass
            else:
                self.w = R[0]
                self.r = set().union(*R[1:]) if len(R) > 1 else set()
                if op.startswith(("v_fmac", "v_mac", "v_pk_fmac", "v_dot2c", "v_writelane")) or "UNUSED_PRESERVE" in mods or "op_sel" in mods:
                    self.r |= R[0]
                if op.startswith("v_cndmask") and len(ops) == 3:
                    self.r |= {("s", "vcc")}
        elif op.startswith("ds_"):
            self.kind = "ds"
            if op.startswith("ds_read") or op.startswith("ds_bpermute") or op.startswith("ds_permute") or op.startswith("ds_swizzle") or "_rtn" in op:
                self.w = R[0]
                self.r = set().union(*R[1:])
            else:
                self.r = allr
        elif op.startswith(("buffer_", "global_", "flat_")):
            self.kind = "vmem"
            is_lds = re.search(r"\blds\b", mods) is not None or "_lds_" in op
            if "load" in op and not is_lds:
                self.w = R[0]
                self.r = set().union(*R[1:])
            elif "atomic" in op and "sc0" in mods:
                self.w = R[0]
                self.r = allr
            else:
                self.r = allr
                if is_lds:
                    self.r = self.r | {("s", "m0")}
                    self.ldsdma = True
            self.wide_store = ("store" in op and ("x3" in op or "x4" in op))
            if self.wide_store:
                self.sdata = R[0] if op.startswith("buffer_") else R[1]
        elif op.startswith("s_"):
            self.kind = "salu"
            if op.startswith(("s_load", "s_buffer_load", "s_memtime", "s_memrealtime", "s_atomic")):
                self.kind = "smem"
                self.w = R[0] if R else set()
                self.r = set().union(*R[1:]) if len(R) > 1 else set()
            elif op.startswith(NODST_S):
                self.r = allr
            else:
                self.w = R[0] if R else set()
                self.r = set().union(*R[1:]) if len(R) > 1 else set()
                if "saveexec" in op:
                    self.w = self.w | {("s", "exec")}
        self.ws = 1
        if op == "s_nop":
            self.ws = int(ops[0], 0) + 1


def vonly(s):
    return {x for x in s if x[0] in ("v", "a")}


def sonly(s):
    return {x for x in s if x[0] == "s"}


def need(p, c):
    n = 0
    why = ""

    def up(k, w):
        nonlocal n, why
        if k > n:
            n, why = k, w

    if p.kind == "valu":
        pw = vonly(p.w)
        ps = sonly(p.w)
        if c.kind == "mfma" and pw & c.r:
            up(2, "VALU->MFMA operand")
        if c.kind == "mfma" and ("s", "exec") in p.w:
            up(4, "VALU exec->MFMA")
        if c.kind == "valu" and c.op.startswith(("v_readlane", "v_readfirstlane")) and pw & c.r:
            up(1, "VALU->readlane")
        if c.kind == "valu" and c.op.startswith("v_permlane") and pw & c.r:
            up(2, "VALU->permlane")
        if c.kind == "valu" and ("dpp" in c.op or "row_" in c.mods or "quad_perm" in c.mods) and pw & c.r:
            up(2, "VALU->DPP")
        if p.op.startswith(TRANS) and c.kind == "valu" and not c.op.startswith(TRANS) and pw & c.r:
            up(1, "trans->VALU")
        if p.op.startswith(TRANS) and c.kind in ("ds", "vmem") and pw & c.r:
            up(1, "trans->mem (conservative)")
        if ("sdwa" in p.op or "op_sel" in p.mods) and c.kind == "valu" and pw & (c.r | c.w):
            up(1, "sdwa/opsel->VALU")
        if ps:
            if c.kind == "vmem" and ps & c.r:
                up(5, "VALU sgpr->VMEM")
            if c.kind == "valu" and (ps - {("s", "exec")}) & c.r:
                up(4 if c.op.startswith(("v_readlane", "v_writelane")) else 2, "VALU sgpr->VALU")
            if ("s", "exec") in ps and c.kind == "valu" and c.op.startswith(("v_readlane", "v_readfirstlane", "v_writelane", "v_permlane")):
                up(4, "VALU exec->lane op")
            if c.kind in ("salu", "smem") and ps & c.r:
                up(1, "VALU sgpr->SALU (conservative)")
    if p.kind == "salu":
        if ("s", "m0") in p.w and getattr(c, "ldsdma", False):
            up(1, "m0->LDS DMA")
    if p.kind == "vmem" and getattr(p, "wide_store", False):
        if c.kind in ("valu", "mfma") and p.sdata & c.w:
            up(2, "wide store data WAR")
        elif p.sdata & c.w:
            up(1, "wide store data WAR")
    if p.kind == "mfma":
        P = p.passes
        tab_ab = {2: 5, 4: 8, 8: 12, 16: 20}
        tab_cpart = {2: 4, 4: 6, 8: 10, 16: 18}
        tab_war = {2: 1, 4: 3, 8: 7, 16: 15}
        if c.kind == "mfma":
            if p.w & (c.A | c.B):
                up(tab_ab[P], "MFMA D->MFMA A/B")
            if p.w & c.C:
                if not (c.C == p.w and c.passes == P):
                    up(tab_cpart[P], "MFMA D->MFMA C partial")
            elif p.w & c.w:
                up(tab_cpart[P], "MFMA D->MFMA D WAW")
        elif c.kind in ("valu", "ds", "vmem"):
            if p.w & (c.r | c.w):
                up(tab_ab[P], "MFMA D->VALU/mem")
            if c.kind == "valu" and p.C & c.w:
                up(tab_war[P], "MFMA C WAR")
    return n, why


def check_hazards(text, maxws=21):
    lines = []
    labels = {}
    for l in text.split("\n"):
        s = l.split(";")[0].strip()
        if not s or s.startswith("."):
            if s.startswith(".section") or s.startswith(".amdhsa") or s.startswith(".end"):
                pass
            continue
        if s.endswith(":"):
            labels[s[:-1]] = len(lines)
            continue
        lines.append(Ins(s))
    n = len(lines)

    def succ(i):
        ins = lines[i]
        op = ins.op
        if op == "s_endpgm":
            return []
        if op == "s_branch":
            return [labels[ins.ops[0]]]
        if op.startswith("s_cbranch"):
            return [i + 1, labels[ins.ops[0]]]
        return [i + 1] if i + 1 < n else []

    probs = []
    for i, p in enumerate(lines):
        if p.kind not in ("valu", "mfma", "salu", "vmem"):
            continue
        if p.kind == "salu" and ("s", "m0") not in p.w:
            continue
        if p.kind == "vmem" and not getattr(p, "wide_store", False):
            continue
        lim = maxws if p.kind == "mfma" else 6
        stack = [(j, 0) for j in succ(i)]
        seen = {}
        while stack:
            j, d = stack.pop()
            if j >= n or d >= lim:
                continue
            if seen.get(j, 99) <= d:
                continue
            seen[j] = d
            c = lines[j]
            k, why = need(p, c)
            if k > d:
                probs.append(f"HAZARD {why}: need {k} have {d}:\n   P[{i}]: {p.text}\n   C[{j}]: {c.text}")
            for s2 in succ(j):
                stack.append((s2, d + c.ws))
    return probs
```

```python
from asmlib import *
from layout import *


def kernel_footer(name, vgpr, sgpr=102):
    acc = (vgpr + 3) // 4 * 4
    return f""".amdhsa_kernel {name}
  .amdhsa_next_free_vgpr {vgpr}
  .amdhsa_next_free_sgpr {sgpr}
  .amdhsa_accum_offset {acc}
  .amdhsa_group_segment_fixed_size 0
  .amdhsa_kernarg_size 88
  .amdhsa_user_sgpr_count 2
  .amdhsa_user_sgpr_kernarg_segment_ptr 1
  .amdhsa_system_sgpr_workgroup_id_x 1
.end_amdhsa_kernel
"""


def kernel_header(a, name):
    a.raw(f".globl {name}")
    a.raw(".p2align 8")
    a.raw(f".type {name},@function")
    a.label(name)


ATT_LDS_M = 0
ATT_LDS_FLAG = 1024
ATT_LDS_MAX = 2048
ATT_LDS_O = 4096
ATT_LDS_SIZE = 4096 + 24576
OFFS = 48.0


def gen_attn(a, name="attn_kernel", NQ=4, D=4, U=4, NKT=32, stamp=False, vzero=False, offs=OFFS, abl=()):
    assert U % D == 0
    kernel_header(a, name)
    v = RegAlloc(1, 256)
    vK1 = v.alloc(); vK2 = v.alloc(); vV = v.alloc()
    vL31 = v.alloc()
    vT = [v.alloc() for _ in range(6)]
    Q1 = [v.alloc(4, 4) for _ in range(NQ)]
    Q2 = [v.alloc(2, 2) for _ in range(NQ)]
    O = [v.alloc(16, 4) for _ in range(NQ)]
    S = [v.alloc(16, 4) for _ in range(2)]
    P = v.alloc(8, 4)
    K1 = [v.alloc(4, 4) for _ in range(D)]
    K2 = [v.alloc(2, 2) for _ in range(D)]
    V0 = [v.alloc(4, 4) for _ in range(D)]
    V1 = [v.alloc(4, 4) for _ in range(D)]
    sWS = 4
    sW = 8
    sKV0 = 9
    sKV = 10
    sCnt = 11
    sQ = 12
    sT = 13
    sPass = 20
    sHP = 21; sRB = 22; sHead = 23
    sUp = 24
    sOff = 26

    a(f"""
    s_cmp_ge_u32 s2, 256
    s_cbranch_scc1 {name}_end
    {"s_memtime s[40:41]" if stamp else ""}
    {"s_memrealtime s[50:51]" if stamp else ""}
    s_load_dwordx2 s[4:5], s[0:1], 80
    v_lshrrev_b32 v{vT[0]}, 6, v0
    v_and_b32 v0, 63, v0
    v_readfirstlane_b32 s{sW}, v{vT[0]}
    s_and_b32 s{sT}, s2, 7
    s_lshr_b32 s{sT+1}, s2, 3
    s_and_b32 s{sT+2}, s{sT+1}, 1
    s_lshl_b32 s{sHP}, s{sT}, 1
    s_add_u32 s{sHP}, s{sHP}, s{sT+2}
    s_lshr_b32 s{sRB}, s2, 4
    s_lshr_b32 s{sT}, s{sW}, 1
    s_lshl_b32 s{sHead}, s{sHP}, 1
    s_add_u32 s{sHead}, s{sHead}, s{sT}
    s_mov_b32 s6, {WS_BYTES:#x}
    s_mov_b32 s7, 0x00020000
    s_mov_b32 s{sUp}, 0
    s_mov_b32 s{sUp+1}, -1
    s_mov_b32 s{sPass}, 0
    s_mul_i32 s{sKV0}, s{sHead}, {KV_HEAD}
    s_and_b32 s{sT}, s{sW}, 1
    s_mul_i32 s{sT}, s{sT}, {NKT*KV_TILE}
    s_add_u32 s{sKV0}, s{sKV0}, s{sT}
    s_add_u32 s{sKV0}, s{sKV0}, {KVF:#x}
    s_lshl_b32 s{sQ}, s{sHead}, 6
    s_lshl_b32 s{sT}, s{sRB}, 2
    s_add_u32 s{sQ}, s{sQ}, s{sT}
    s_mul_i32 s{sQ}, s{sQ}, {Q_TILE}
    s_add_u32 s{sQ}, s{sQ}, {QF:#x}
    v_lshlrev_b32 v{vK1}, 4, v0
    v_lshlrev_b32 v{vK2}, 3, v0
    v_and_b32 v{vT[0]}, 31, v0
    v_lshlrev_b32 v{vL31}, 2, v{vT[0]}
    v_min_u32 v{vT[0]}, 20, v{vT[0]}
    v_lshrrev_b32 v{vT[1]}, 5, v0
    v_mul_u32_u24 v{vT[1]}, 21, v{vT[1]}
    v_add_u32 v{vT[0]}, v{vT[0]}, v{vT[1]}
    v_lshlrev_b32 v{vV}, 4, v{vT[0]}
    v_cmp_gt_u32 vcc, 84, v{vL31}
    v_mov_b32 v{vT[2]}, 0x80000000
    s_nop 0
    {f"v_cndmask_b32 v{vV}, v{vT[2]}, v{vV}, vcc" if vzero else ""}
    v_cmp_gt_u32 vcc, 32, v0
    v_mov_b32 v{vT[2]}, 0x80000000
    s_nop 0
    v_cndmask_b32 v{vT[2]}, v{vT[2]}, v{vK2}, vcc
    s_waitcnt lgkmcnt(0)
    """)

    def load_kv(buf, which):
        if which == 0:
            a(f"buffer_load_dwordx4 {vr(K1[buf],4)}, v{vK1}, s[4:7], s{sKV} offen")
        elif which == 1:
            a(f"buffer_load_dwordx2 {vr(K2[buf],2)}, v{vK2}, s[4:7], s{sKV} offen offset:1024")
        elif which == 2:
            a(f"buffer_load_dwordx4 {vr(V0[buf],4)}, v{vV}, s[4:7], s{sKV} offen offset:1536")
        else:
            a(f"buffer_load_dwordx4 {vr(V1[buf],4)}, v{vV}, s[4:7], s{sKV} offen offset:{1536+672}")

    def qk1(sbuf, kb, q):
        a(f"v_mfma_f32_32x32x16_bf16 {vr(S[sbuf],16)}, {vr(K1[kb],4)}, {vr(Q1[q],4)}, 0")

    def qk2(sbuf, kb, q):
        a(f"v_mfma_f32_32x32x8_bf16 {vr(S[sbuf],16)}, {vr(K2[kb],2)}, {vr(Q2[q],2)}, {vr(S[sbuf],16)}")

    def prologue_kv_loads():
        a(f"s_mov_b32 s{sKV}, s{sKV0}")
        for b in range(D - 1):
            for wch in range(4):
                load_kv(b, wch)
            a(f"s_add_u32 s{sKV}, s{sKV}, {KV_TILE}")

    for q in range(NQ):
        a(f"s_add_u32 s{sT}, s{sQ}, {q*Q_TILE}")
        a(f"buffer_load_dwordx4 {vr(Q1[q],4)}, v{vK1}, s[4:7], s{sT} offen")
        a(f"buffer_load_dwordx2 {vr(Q2[q],2)}, v{vT[2]}, s[4:7], s{sT} offen offset:1024")
    prologue_kv_loads()

    def maxtree(sbuf, dst, first):
        s = S[sbuf]
        i = 0
        if first:
            a(f"v_max3_f32 v{dst}, v{s}, v{s+1}, v{s+2}")
            a(f"v_max3_f32 v{dst}, v{dst}, v{s+3}, v{s+4}")
            i = 5
            while i + 1 < 16:
                a(f"v_max3_f32 v{dst}, v{dst}, v{s+i}, v{s+i+1}")
                i += 2
            a(f"v_max_f32 v{dst}, v{dst}, v{s+15}")
        else:
            for i in range(0, 16, 2):
                a(f"v_max3_f32 v{dst}, v{dst}, v{s+i}, v{s+i+1}")

    def cross_half_max(r, tmp):
        a(f"v_mov_b32 v{tmp}, v{r}")
        a("s_nop 1")
        a(f"v_permlane32_swap_b32 v{r}, v{tmp}")
        a(f"v_max_f32 v{r}, v{r}, v{tmp}")

    def pack_negm(r, tmp):
        a(f"v_sub_f32 v{r}, s{sOff}, v{r}")
        a(f"v_cvt_pk_bf16_f32 v{tmp}, v{r}, v{r}")
        a(f"v_and_b32 v{tmp}, 0xffff0000, v{tmp}")
        a(f"v_sub_f32 v{tmp}, v{r}, v{tmp}")
        a(f"v_cvt_pk_bf16_f32 v{r}, v{r}, v{tmp}")

    import struct
    negoff = struct.unpack("<I", struct.pack("<f", -offs))[0]
    a(f"s_mov_b32 s{sOff}, {negoff:#x}")
    a(f"s_waitcnt vmcnt({4*(D-1)-6})")
    a(f"s_and_b32 s{sT}, s{sW}, 1")
    a(f"s_cmp_eq_u32 s{sT}, 0")
    a(f"s_cbranch_scc0 {name}_mx1")
    for g in range(2):
        if g == 1:
            a.label(f"{name}_mx1")
        for i in range(2):
            q = 2 * g + i
            qk1(0, 0, q); qk2(0, 0, q)
            qk1(1, 1, q); qk2(1, 1, q)
            a("s_nop 7")
            a("s_nop 2")
            maxtree(0, vT[i], True)
            a("s_nop 2")
            maxtree(1, vT[i], False)
        if g == 0:
            a(f"s_branch {name}_mxj")
    a.label(f"{name}_mxj")
    for i in range(2):
        cross_half_max(vT[i], vT[3])
        pack_negm(vT[i], vT[3])
    a(f"""
    s_lshl_b32 s{sT}, s{sW}, 8
    v_add_u32 v{vT[3]}, s{sT}, v{vL31}
    ds_write_b32 v{vT[3]}, v{vT[0]} offset:{ATT_LDS_M}
    ds_write_b32 v{vT[3]}, v{vT[1]} offset:{ATT_LDS_M+128}
    v_mov_b32 v{vT[4]}, 0
    ds_write_b32 v{vT[4]}, v{vT[4]} offset:{ATT_LDS_FLAG}
    """)
    a.label(f"{name}_start")
    for q in range(NQ):
        for i in range(16):
            a(f"v_mov_b32 v{O[q]+i}, 0")
    for i in range(4, 8):
        a(f"v_mov_b32 v{P+i}, 0")
    for i in range(4):
        a(f"v_mov_b32 v{V1[D-1]+i}, 0")
    a(f"""
    s_waitcnt lgkmcnt(0)
    s_barrier
    s_lshr_b32 s{sT}, s{sW}, 1
    s_lshl_b32 s{sT}, s{sT}, 9
    v_add_u32 v{vT[3]}, s{sT}, v{vL31}
    s_mov_b64 exec, s[{sUp}:{sUp+1}]
    """)
    for q in range(NQ):
        a(f"ds_read_b32 v{Q2[q]}, v{vT[3]} offset:{ATT_LDS_M + q*128}")
    a(f"""
    s_mov_b64 exec, -1
    s_mov_b32 s{sCnt}, {NKT//U}
    s_waitcnt vmcnt({4*(D-2)}) lgkmcnt(0)
    """)
    if stamp:
        a("s_memtime s[42:43]")
        a("s_memrealtime s[56:57]")
    qk1(0, 0, 0)
    qk2(0, 0, 0)
    a("s_nop 7")
    a("s_nop 2")
    a.raw(".p2align 5")
    a.label(f"{name}_loop")
    NT = U * NQ
    for t in range(NT):
        kt, q = divmod(t, NQ)
        ktn, qn = divmod(t + 1, NQ)
        ktp, qp = divmod(t - 1, NQ)
        s = S[t & 1]
        sn = (t + 1) & 1

        def ex(lo):
            if "noqk" in abl:
                for i in range(lo, lo + 4):
                    a(f"v_exp_f32 v{200+i-lo}, v{s+i}")
                a(f"v_cvt_pk_bf16_f32 v{P+lo//2}, v200, v201")
                a(f"v_cvt_pk_bf16_f32 v{P+lo//2+1}, v202, v203")
                return
            for i in range(lo, lo + 4):
                if "noexp" in abl:
                    if "nopfill" in abl: a("s_nop 1")
                else:
                    a(f"v_exp_f32 v{s+i}, v{s+i}")
            if "nocvt" in abl:
                if "nopfill" in abl: a("s_nop 1")
                return
            a(f"v_cvt_pk_bf16_f32 v{P+lo//2}, v{s+lo}, v{s+lo+1}")
            a(f"v_cvt_pk_bf16_f32 v{P+lo//2+1}, v{s+lo+2}, v{s+lo+3}")

        if q == NQ - 1:
            a(f"s_waitcnt vmcnt({4*(D-2)})")
        if "noqk" not in abl: qk1(sn, ktn % D, qn)
        ex(0)
        if "noqk" not in abl and "noqk2" not in abl: qk2(sn, ktn % D, qn)
        ex(4)
        if "nopv" not in abl: a(f"v_mfma_f32_32x32x16_bf16 {vr(O[qp],16)}, {vr(V1[ktp % D],4)}, {vr(P+4,4)}, {vr(O[qp],16)}")
        ex(8)
        if "nopv" not in abl: a(f"v_mfma_f32_32x32x16_bf16 {vr(O[q],16)}, {vr(V0[kt % D],4)}, {vr(P,4)}, {vr(O[q],16)}")
        lb = (kt - 1) % D
        if NQ >= 4:
            if q == 0:
                load_kv(lb, 0); load_kv(lb, 1)
            elif q == 1:
                load_kv(lb, 2); load_kv(lb, 3)
                a(f"s_add_u32 s{sKV}, s{sKV}, {KV_TILE}")
        if t == NT - 1:
            a(f"s_sub_u32 s{sCnt}, s{sCnt}, 1")
            a(f"s_cmp_lg_u32 s{sCnt}, 0")
        ex(12)
    a(f"s_cbranch_scc1 {name}_loop")
    if stamp:
        a("s_memtime s[44:45]")
        a("s_memrealtime s[58:59]")
    a("s_nop 0")
    a(f"v_mfma_f32_32x32x16_bf16 {vr(O[NQ-1],16)}, {vr(V1[(U-1) % D],4)}, {vr(P+4,4)}, {vr(O[NQ-1],16)}")
    a(f"""
    s_mul_i32 s{sT}, s{sW}, 6144
    v_add_u32 v{vT[0]}, s{sT}, v{vK1}
    s_xor_b32 s{sT+1}, s{sW}, 1
    s_mul_i32 s{sT+1}, s{sT+1}, 6144
    v_add_u32 v{vT[1]}, s{sT+1}, v{vK1}
    s_and_b32 s{sT}, s{sW}, 1
    s_cmp_eq_u32 s{sT}, 0
    s_nop 7
    s_cbranch_scc1 {name}_mg0
    """)
    def merge(keep, send, lab):
        for i, q in enumerate(send):
            for j in range(3):
                a(f"ds_write_b128 v{vT[0]}, {vr(O[q]+4*j,4)} offset:{ATT_LDS_O + (i*3+j)*1024}")
        a("s_waitcnt lgkmcnt(0)")
        a("s_barrier")
        for i in range(2):
            for j in range(3):
                a(f"ds_read_b128 {vr(S[i]+4*j,4)}, v{vT[1]} offset:{ATT_LDS_O + (i*3+j)*1024}")
        a("s_waitcnt lgkmcnt(0)")
        for i, q in enumerate(keep):
            for j in range(12):
                a(f"v_add_f32 v{S[i]+j}, v{S[i]+j}, v{O[q]+j}")
    merge([2, 3], [0, 1], "1")
    a(f"s_branch {name}_mgj")
    a.label(f"{name}_mg0")
    merge([0, 1], [2, 3], "0")
    a.label(f"{name}_mgj")
    a(f"s_mov_b32 s{sT+4}, 0x76800000")
    a(f"s_mov_b32 s{sT+5}, 0x7f000000")
    for i in range(2):
        s = S[i]
        a(f"""
        v_mov_b32 v{vT[2]}, v{s+8}
        v_mov_b32 v{vT[3]}, v{s+8}
        s_nop 1
        v_permlane32_swap_b32 v{vT[2]}, v{vT[3]}
        """)
        a(f"v_cmp_ngt_f32 s[{28+2*i}:{29+2*i}], s{sT+4}, v{vT[3]}")
        a(f"v_rcp_f32 v{vT[3]}, v{vT[3]}")
        a("s_nop 0")
        for j in range(12):
            a(f"v_mul_f32 v{s+j}, v{s+j}, v{vT[3]}")
        a(f"v_maximum3_f32 v{vT[4]}, |v{s}|, |v{s+1}|, |v{s+2}|")
        for j in (3, 5):
            a(f"v_maximum3_f32 v{vT[4]}, v{vT[4]}, |v{s+j}|, |v{s+j+1}|")
        a(f"v_maximum3_f32 v{vT[4]}, v{vT[4]}, |v{s+7}|, |v{s+8}|")
        a(f"v_maximum3_f32 v{vT[5]}, |v{s+9}|, |v{s+10}|, |v{s+11}|")
        a(f"v_cndmask_b32 v{vT[5]}, v{vT[5]}, v{vT[4]}, s[{sUp}:{sUp+1}]")
        a(f"v_maximum3_f32 v{vT[4]}, v{vT[4]}, v{vT[5]}, v{vT[5]}")
        a(f"v_cmp_ngt_f32 s[{32+2*i}:{33+2*i}], s{sT+5}, v{vT[4]}")
    a(f"""
    s_nop 0
    s_or_b64 s[28:29], s[28:29], s[30:31]
    s_or_b64 s[32:33], s[32:33], s[34:35]
    s_or_b64 s[28:29], s[28:29], s[32:33]
    s_cmp_eq_u32 s{sPass}, 0
    s_cbranch_scc0 {name}_store
    s_cmp_eq_u64 s[28:29], 0
    s_cbranch_scc1 {name}_noflag
    v_mov_b32 v{vT[4]}, 0
    v_mov_b32 v{vT[5]}, 1
    ds_write_b32 v{vT[4]}, v{vT[5]} offset:{ATT_LDS_FLAG}
    """)
    a.label(f"{name}_noflag")
    a(f"""
    s_waitcnt lgkmcnt(0)
    s_barrier
    v_mov_b32 v{vT[4]}, 0
    ds_read_b32 v{vT[4]}, v{vT[4]} offset:{ATT_LDS_FLAG}
    s_waitcnt lgkmcnt(0)
    v_readfirstlane_b32 s{sT}, v{vT[4]}
    s_nop 0
    s_cmp_lg_u32 s{sT}, 0
    {"" if abl else f"s_cbranch_scc1 {name}_fallback"}
    """)
    a.label(f"{name}_store")
    a(f"""
    v_and_b32 v{vT[0]}, 15, v0
    v_lshlrev_b32 v{vT[0]}, 4, v{vT[0]}
    v_bfe_u32 v{vT[1]}, v0, 4, 1
    v_mul_u32_u24 v{vT[1]}, 20480, v{vT[1]}
    v_add_u32 v{vT[0]}, v{vT[0]}, v{vT[1]}
    v_lshrrev_b32 v{vT[1]}, 5, v0
    v_lshlrev_b32 v{vT[1]}, 8, v{vT[1]}
    v_add_u32 v{vT[1]}, v{vT[0]}, v{vT[1]}
    v_mov_b32 v{vT[2]}, 0x80000000
    v_cndmask_b32 v{vT[0]}, v{vT[0]}, v{vT[2]}, s[{sUp}:{sUp+1}]
    s_lshl_b32 s{sT}, s{sRB}, 3
    s_and_b32 s{sT+1}, s{sW}, 1
    s_lshl_b32 s{sT+1}, s{sT+1}, 2
    s_add_u32 s{sT}, s{sT}, s{sT+1}
    s_mul_i32 s{sT}, s{sT}, 20480
    s_add_u32 s{sT}, s{sT}, {OF:#x}
    s_lshr_b32 s{sT+2}, s{sW}, 1
    s_lshl_b32 s{sT+3}, s{sHP}, 10
    s_add_u32 s{sT+3}, s{sT+3}, s{sT}
    s_lshl_b32 s{sT+4}, s{sT+2}, 9
    s_add_u32 s{sT+3}, s{sT+3}, s{sT+4}
    s_lshl_b32 s{sT+4}, s{sHP}, 8
    s_add_u32 s{sT+4}, s{sT+4}, 16384
    s_add_u32 s{sT+4}, s{sT+4}, s{sT}
    s_lshl_b32 s{sT+5}, s{sT+2}, 3
    s_add_u32 s{sT+4}, s{sT+4}, s{sT+5}
    """)
    for i in range(2):
        s = S[i]
        for j in range(6):
            a(f"v_cvt_pk_bf16_f32 v{s+j}, v{s+2*j}, v{s+2*j+1}")
        a(f"buffer_store_dwordx4 {vr(s,4)}, v{vT[1]}, s[4:7], s{sT+3} offen")
        a(f"buffer_store_dwordx2 {vr(s+4,2)}, v{vT[0]}, s[4:7], s{sT+4} offen")
        if i == 0:
            a(f"s_add_u32 s{sT+3}, s{sT+3}, 40960")
            a(f"s_add_u32 s{sT+4}, s{sT+4}, 40960")
    if stamp:
        a(f"""
        s_waitcnt vmcnt(0)
        s_memtime s[46:47]
        s_memrealtime s[52:53]
        s_waitcnt lgkmcnt(0)
        s_sub_u32 s42, s42, s40
        s_sub_u32 s44, s44, s40
        s_sub_u32 s46, s46, s40
        v_mov_b32 v{S[0]}, s42
        v_mov_b32 v{S[0]+1}, s44
        v_mov_b32 v{S[0]+2}, s46
        v_mov_b32 v{S[0]+3}, s50
        v_mov_b32 v{S[0]+4}, s52
        v_mov_b32 v{S[0]+5}, s56
        v_mov_b32 v{S[0]+6}, s58
        s_lshl_b32 s54, s2, 2
        s_add_u32 s54, s54, s{sW}
        s_lshl_b32 s54, s54, 5
        s_add_u32 s54, s54, {STAMP:#x}
        v_mov_b32 v{vT[0]}, 0
        s_mov_b64 exec, 1
        buffer_store_dwordx4 {vr(S[0],4)}, v{vT[0]}, s[4:7], s54 offen
        buffer_store_dwordx4 {vr(S[0]+4,4)}, v{vT[0]}, s[4:7], s54 offen offset:16
        """)
    a.label(f"{name}_end")
    a("s_endpgm")

    a.label(f"{name}_fallback")
    a(f"""
    s_mov_b32 s{sPass}, 1
    s_mov_b32 s{sOff}, 0
    s_waitcnt vmcnt(0)
    s_mov_b64 exec, s[{sUp}:{sUp+1}]
    """)
    for q in range(NQ):
        a(f"v_mov_b32 v{Q2[q]}, 0")
    a("s_mov_b64 exec, -1")
    for q in range(NQ):
        a(f"v_mov_b32 v{O[0]+q}, 0xff800000")
    a(f"s_mov_b32 s{sKV}, s{sKV0}")
    a(f"s_mov_b32 s{sCnt}, {NKT}")
    a.label(f"{name}_fbloop")
    load_kv(0, 0); load_kv(0, 1)
    a(f"s_add_u32 s{sKV}, s{sKV}, {KV_TILE}")
    a("s_waitcnt vmcnt(0)")
    for q in range(NQ):
        qk1(0, 0, q); qk2(0, 0, q)
        a("s_nop 7")
        a("s_nop 3")
        maxtree(0, O[0] + q, False)
    a(f"""
    s_sub_u32 s{sCnt}, s{sCnt}, 1
    s_cmp_lg_u32 s{sCnt}, 0
    s_cbranch_scc1 {name}_fbloop
    s_lshl_b32 s{sT}, s{sW}, 9
    v_add_u32 v{vT[3]}, s{sT}, v{vL31}
    """)
    for q in range(NQ):
        cross_half_max(O[0] + q, vT[0])
        a(f"ds_write_b32 v{vT[3]}, v{O[0]+q} offset:{ATT_LDS_MAX + q*128}")
    a(f"""
    s_waitcnt lgkmcnt(0)
    s_barrier
    s_xor_b32 s{sT}, s{sW}, 1
    s_lshl_b32 s{sT}, s{sT}, 9
    v_add_u32 v{vT[3]}, s{sT}, v{vL31}
    """)
    for q in range(NQ):
        a(f"ds_read_b32 v{O[1]+q}, v{vT[3]} offset:{ATT_LDS_MAX + q*128}")
    a("s_waitcnt lgkmcnt(0)")
    a(f"s_lshr_b32 s{sT}, s{sW}, 1")
    a(f"s_lshl_b32 s{sT}, s{sT}, 9")
    a(f"v_add_u32 v{vT[3]}, s{sT}, v{vL31}")
    for q in range(NQ):
        a(f"v_max_f32 v{O[0]+q}, v{O[0]+q}, v{O[1]+q}")
        pack_negm(O[0] + q, vT[0])
        a(f"ds_write_b32 v{vT[3]}, v{O[0]+q} offset:{ATT_LDS_M + q*128}")
    prologue_kv_loads()
    a(f"s_branch {name}_start")
    return max(v.hi, 208) if abl else v.hi
```

```python
from asmlib import *
from layout import *
from k_attn import kernel_header

OOB = 0x80000000

def f0_body(a, v, sU, sT, srdX, srdWS, mods=""):
    vT = [v.alloc() for _ in range(4)]
    off = [v.alloc() for _ in range(4)]
    X = [[v.alloc(4, 4) for _ in range(2)] for _ in range(4)]
    Y = [v.alloc(4, 4) for _ in range(8)]
    z = [v.alloc() for _ in range(16)]
    lo = [v.alloc() for _ in range(8)]
    a(f"""
    s_mul_i32 s{sT}, s{sU}, 3277
    s_lshr_b32 s{sT}, s{sT}, 16
    s_mul_i32 s{sT+1}, s{sT}, 20
    s_sub_u32 s{sT+1}, s{sU}, s{sT+1}
    v_and_b32 v{vT[0]}, 19, v0
    v_lshrrev_b32 v{vT[1]}, 1, v0
    v_and_b32 v{vT[1]}, 4, v{vT[1]}
    v_lshlrev_b32 v{vT[2]}, 1, v0
    v_and_b32 v{vT[2]}, 8, v{vT[2]}
    v_or3_b32 v{vT[0]}, v{vT[0]}, v{vT[1]}, v{vT[2]}
    s_lshl_b32 s{sT+2}, s{sT}, 5
    v_add_u32 v{vT[0]}, s{sT+2}, v{vT[0]}
    v_lshrrev_b32 v{vT[1]}, 5, v0
    v_lshlrev_b32 v{vT[1]}, 4, v{vT[1]}
    v_mul_u32_u24 v{vT[2]}, 1280, v{vT[0]}
    v_add_u32 v{off[0]}, v{vT[2]}, v{vT[1]}
    v_sub_u32 v{off[1]}, v{vT[1]}, v{vT[2]}
    v_add_u32 v{off[2]}, {1024*1280}, v{off[1]}
    v_add_u32 v{off[1]}, {2048*1280}, v{off[1]}
    v_add_u32 v{off[3]}, {1024*1280}, v{off[0]}
    v_mov_b32 v{vT[3]}, {OOB:#x}
    v_cmp_lt_u32 vcc, 512, v{vT[0]}
    s_lshl_b32 s{sT+2}, s{sT+1}, 5
    s_mul_i32 s{sT+3}, s{sU}, 1024
    v_cndmask_b32 v{off[0]}, v{off[0]}, v{vT[3]}, vcc
    v_cndmask_b32 v{off[1]}, v{off[1]}, v{vT[3]}, vcc
    v_cmp_lt_u32 vcc, 511, v{vT[0]}
    s_add_u32 s{sT+3}, s{sT+3}, {XF:#x}
    s_nop 0
    v_cndmask_b32 v{off[2]}, v{off[2]}, v{vT[3]}, vcc
    v_cndmask_b32 v{off[3]}, v{off[3]}, v{vT[3]}, vcc
    v_cmp_eq_u32 vcc, 0, v{vT[0]}
    v_lshlrev_b32 v{vT[0]}, 4, v0
    s_nop 0
    v_cndmask_b32 v{off[3]}, v{off[3]}, v{vT[3]}, vcc
    """)
    for i in range(4):
        for hf in range(2):
            a(f"buffer_load_dwordx4 {vr(X[i][hf],4)}, v{off[i]}, {srdX}, s{sT+2} offen offset:{640*hf}")
    a("s_waitcnt vmcnt(0)")
    for dw in range(4):
        for part in range(2):
            for i in range(4):
                for hf in range(2):
                    d = z[2 * i + hf]
                    if part == 0:
                        a(f"v_lshlrev_b32 v{d}, 16, v{X[i][hf]+dw}")
                    else:
                        a(f"v_and_b32 v{d}, 0xffff0000, v{X[i][hf]+dw}")
            for i in range(4):
                a(f"v_add_f32 v{z[8+2*i]}, v{z[2*i]}, v{z[2*i+1]}")
                a(f"v_sub_f32 v{z[8+2*i+1]}, v{z[2*i]}, v{z[2*i+1]}")
            for p in range(2):
                a(f"v_add_f32 v{z[4*p+0]}, v{z[8+p]}, v{z[10+p]}")
                a(f"v_add_f32 v{z[4*p+1]}, v{z[12+p]}, v{z[14+p]}")
                a(f"v_sub_f32 v{z[4*p+2]}, v{z[8+p]}, v{z[10+p]}")
                a(f"v_sub_f32 v{z[4*p+3]}, v{z[12+p]}, v{z[14+p]}")
            for p in range(2):
                dst = [lo[2 * c + p] if part == 0 else z[8 + 2 * c + p] for c in range(4)]
                a(f"v_add_f32 v{dst[0]}, v{z[4*p]}, v{z[4*p+1]}")
                a(f"v_sub_f32 v{dst[1]}, v{z[4*p]}, v{z[4*p+1]}")
                a(f"v_sub_f32 v{dst[2]}, v{z[4*p+2]}, v{z[4*p+3]}")
                a(f"v_add_f32 v{dst[3]}, v{z[4*p+2]}, v{z[4*p+3]}")
        for m in range(8):
            a(f"v_cvt_pk_bf16_f32 v{Y[m]+dw}, v{lo[m]}, v{z[8+m]}")
    for m in range(8):
        a(f"buffer_store_dwordx4 {vr(Y[m],4)}, v{vT[0]}, {srdWS}, s{sT+3} offen{mods}")
        if m < 7:
            a(f"s_add_u32 s{sT+3}, s{sT+3}, {340*1024}")


def g1_body(a, v, sU, sT, srdM, pC, pS, srdWS, ldmods="", stmods=""):
    vT = [v.alloc() for _ in range(4)]
    acc = v.alloc(16, 4)
    A = [v.alloc(4, 4) for _ in range(20)]
    B = [v.alloc(4, 4) for _ in range(20)]
    a(f"""
    s_mul_i32 s{sT}, s{sU}, 5609
    s_lshr_b32 s{sT}, s{sT}, 20
    s_mul_i32 s{sT+1}, s{sT}, 187
    s_sub_u32 s{sT+1}, s{sU}, s{sT+1}
    s_mul_i32 s{sT+2}, s{sT+1}, 5958
    s_lshr_b32 s{sT+2}, s{sT+2}, 16
    s_mul_i32 s{sT+3}, s{sT+2}, 11
    s_sub_u32 s{sT+3}, s{sT+1}, s{sT+3}
    s_cmp_ge_u32 s{sT+3}, 6
    s_cselect_b32 s{sT+4}, 1, 0
    s_cselect_b32 s{sT+5}, 6, 0
    s_sub_u32 s{sT+3}, s{sT+3}, s{sT+5}
    s_cmp_ge_u32 s{sT}, 2
    s_cselect_b32 s{srdM}, s{pS}, s{pC}
    s_cselect_b32 s{srdM+1}, s{pS+1}, s{pC+1}
    s_mov_b32 s{srdM+2}, {640*1280}
    s_mov_b32 s{srdM+3}, 0x00020000
    ; e = 2*(32 et + (l&31)) + p
    s_lshl_b32 s{sT+5}, s{sT+3}, 6
    s_add_u32 s{sT+5}, s{sT+5}, s{sT+4}
    v_and_b32 v{vT[0]}, 31, v0
    v_lshl_add_u32 v{vT[0]}, v{vT[0]}, 1, s{sT+5}
    v_lshrrev_b32 v{vT[1]}, 5, v0
    v_mul_u32_u24 v{vT[2]}, 1280, v{vT[0]}
    v_lshl_add_u32 v{vT[2]}, v{vT[1]}, 4, v{vT[2]}
    v_lshlrev_b32 v{vT[3]}, 4, v0
    s_lshl_b32 s{sT+5}, s{sT}, 1
    s_add_u32 s{sT+5}, s{sT+5}, s{sT+4}
    s_mul_i32 s{sT+5}, s{sT+5}, 17
    s_add_u32 s{sT+5}, s{sT+5}, s{sT+2}
    s_mul_i32 s{sT+5}, s{sT+5}, 20480
    s_add_u32 s{sT+5}, s{sT+5}, {XF:#x}
    """)
    for ks in range(20):
        if ks % 4 == 0 and ks:
            a(f"s_add_u32 s{sT+5}, s{sT+5}, 4096")
        a(f"buffer_load_dwordx4 {vr(A[ks],4)}, v{vT[3]}, {srdWS}, s{sT+5} offen offset:{(ks%4)*1024}{ldmods}")
        a(f"buffer_load_dwordx4 {vr(B[ks],4)}, v{vT[2]}, s[{srdM}:{srdM+3}], 0 offen offset:{32*ks}")
    a(f"""
    v_lshrrev_b32 v{vT[2]}, 5, v{vT[0]}
    v_mul_u32_u24 v{vT[2]}, {34*1024}, v{vT[2]}
    v_and_b32 v{vT[0]}, 31, v{vT[0]}
    v_lshl_add_u32 v{vT[0]}, v{vT[1]}, 5, v{vT[0]}
    v_lshl_add_u32 v{vT[0]}, v{vT[0]}, 4, v{vT[2]}
    s_mul_i32 s{sT+5}, s{sT}, {12*34*1024}
    s_lshl_b32 s{sT+4}, s{sT+2}, 11
    s_add_u32 s{sT+5}, s{sT+5}, s{sT+4}
    s_add_u32 s{sT+5}, s{sT+5}, {AF:#x}
    """)
    for ks in range(20):
        if ks % 4 == 0:
            a(f"s_waitcnt vmcnt({2*(16-ks)})")
        c = "0" if ks == 0 else vr(acc, 16)
        a(f"v_mfma_f32_32x32x16_bf16 {vr(acc,16)}, {vr(A[ks],4)}, {vr(B[ks],4)}, {c}")
    a("s_nop 7")
    a("s_nop 3")
    for i in range(8):
        a(f"v_cvt_pk_bf16_f32 v{acc+i}, v{acc+2*i}, v{acc+2*i+1}")
    a(f"buffer_store_dwordx4 {vr(acc,4)}, v{vT[0]}, {srdWS}, s{sT+5} offen{stmods}")
    a(f"buffer_store_dwordx4 {vr(acc+4,4)}, v{vT[0]}, {srdWS}, s{sT+5} offen offset:1024{stmods}")


def g2_body(a, v, name, sU, sT, srdC, srdS, srdWS, srdOut, ldmods=""):
    vT = [v.alloc() for _ in range(8)]
    U = v.alloc(16, 4); V = v.alloc(16, 4)
    G = 3
    F = [[[v.alloc(4, 4) for _ in range(4)] for _ in range(G)] for _ in range(2)]
    a(f"""
    s_mul_i32 s{sT}, s{sU}, 5958
    s_lshr_b32 s{sT}, s{sT}, 16
    s_mul_i32 s{sT+1}, s{sT}, 11
    s_sub_u32 s{sT+1}, s{sU}, s{sT+1}
    s_cmp_ge_u32 s{sT}, 17
    s_cselect_b32 s{sT+2}, 1, 0
    s_cselect_b32 s{sT+3}, 17, 0
    s_sub_u32 s{sT}, s{sT}, s{sT+3}
    s_lshl_b32 s{sT+3}, s{sT}, 6
    s_add_u32 s{sT+3}, s{sT+3}, s{sT+2}
    v_and_b32 v{vT[0]}, 31, v0
    v_lshrrev_b32 v{vT[1]}, 5, v0
    v_lshl_add_u32 v{vT[2]}, v{vT[0]}, 1, s{sT+3}
    v_lshlrev_b32 v{vT[2]}, 12, v{vT[2]}
    v_lshl_add_u32 v{vT[2]}, v{vT[1]}, 4, v{vT[2]}
    v_lshlrev_b32 v{vT[3]}, 4, v0
    s_mul_i32 s{sT+4}, s{sT+2}, 12
    s_add_u32 s{sT+4}, s{sT+4}, s{sT+1}
    s_mul_i32 s{sT+4}, s{sT+4}, {34*1024}
    s_add_u32 s{sT+4}, s{sT+4}, {AF:#x}
    s_add_u32 s{sT+5}, s{sT+4}, {24*34*1024}
    """)

    def loads(g):
        b = g & 1
        for i in range(G):
            ks = g * G + i
            a(f"buffer_load_dwordx4 {vr(F[b][i][0],4)}, v{vT[2]}, {srdC}, 0 offen offset:{32*ks}")
            a(f"buffer_load_dwordx4 {vr(F[b][i][1],4)}, v{vT[3]}, {srdWS}, s{sT+4} offen offset:{i*1024}{ldmods}")
            a(f"buffer_load_dwordx4 {vr(F[b][i][2],4)}, v{vT[2]}, {srdS}, 0 offen offset:{32*ks}")
            a(f"buffer_load_dwordx4 {vr(F[b][i][3],4)}, v{vT[3]}, {srdWS}, s{sT+5} offen offset:{i*1024}{ldmods}")
        a(f"s_add_u32 s{sT+4}, s{sT+4}, {G*1024}")
        a(f"s_add_u32 s{sT+5}, s{sT+5}, {G*1024}")

    NG = 11
    loads(0)
    for g in range(NG):
        b = g & 1
        if g + 1 < NG:
            loads(g + 1)
            a(f"s_waitcnt vmcnt({4*G})")
        else:
            a("s_waitcnt vmcnt(0)")
        for i in range(G):
            first = (g == 0 and i == 0)
            a(f"v_mfma_f32_32x32x16_bf16 {vr(U,16)}, {vr(F[b][i][0],4)}, {vr(F[b][i][1],4)}, {'0' if first else vr(U,16)}")
            a(f"v_mfma_f32_32x32x16_bf16 {vr(V,16)}, {vr(F[b][i][2],4)}, {vr(F[b][i][3],4)}, {'0' if first else vr(V,16)}")
    vA, vB, vC, vD = vT[4], vT[5], vT[6], vT[7]
    a(f"""
    s_lshl_b32 s{sT+4}, s{sT+1}, 5
    v_add_u32 v{vT[0]}, s{sT+4}, v{vT[0]}
    v_mul_u32_u24 v{vT[1]}, 20480, v{vT[1]}
    v_sub_u32 v{vT[2]}, 20480, v{vT[1]}
    v_sub_u32 v{vT[3]}, 640, v{vT[0]}
    v_lshl_add_u32 v{vA}, v{vT[0]}, 1, v{vT[1]}
    v_lshl_add_u32 v{vB}, v{vT[3]}, 1, v{vT[1]}
    v_lshl_add_u32 v{vC}, v{vT[0]}, 1, v{vT[2]}
    v_lshl_add_u32 v{vD}, v{vT[3]}, 1, v{vT[2]}
    v_mov_b32 v{vT[1]}, {OOB:#x}
    v_cmp_lt_u32 vcc, 320, v{vT[0]}
    v_subrev_u32 v{vT[0]}, 1, v{vT[0]}
    s_mul_i32 s{sT+4}, s{sT+3}, 2560
    v_cndmask_b32 v{vA}, v{vA}, v{vT[1]}, vcc
    v_cndmask_b32 v{vC}, v{vC}, v{vT[1]}, vcc
    v_cmp_le_u32 vcc, 319, v{vT[0]}
    s_sub_u32 s{sT+5}, {2040*2560 + 1280}, s{sT+4}
    s_add_u32 s{sT+4}, s{sT+4}, 1280
    v_cndmask_b32 v{vB}, v{vB}, v{vT[1]}, vcc
    v_cndmask_b32 v{vD}, v{vD}, v{vT[1]}, vcc
    s_cmp_eq_u32 s{sT+3}, 1024
    s_cbranch_scc1 {name}_last
    """)
    for i in range(16):
        j, r = divmod(i, 4)
        row = (8 * j + r) * 2 * 2560
        a(f"v_sub_f32 v{vT[0]}, v{U+i}, v{V+i}")
        a(f"v_add_f32 v{vT[1]}, v{U+i}, v{V+i}")
        a(f"s_add_u32 s{sT}, s{sT+4}, {row}")
        a(f"s_sub_u32 s{sT+1}, s{sT+5}, {row}")
        a(f"v_cvt_pk_bf16_f32 v{U+i}, v{vT[0]}, v{vT[1]}")
        a(f"buffer_store_short v{U+i}, v{vA}, {srdOut}, s{sT} offen")
        a(f"buffer_store_short_d16_hi v{U+i}, v{vB}, {srdOut}, s{sT} offen")
        a(f"buffer_store_short_d16_hi v{U+i}, v{vC}, {srdOut}, s{sT+1} offen")
        a(f"buffer_store_short v{U+i}, v{vD}, {srdOut}, s{sT+1} offen")
    a(f"s_branch {name}_done")
    a.label(f"{name}_last")
    a(f"""
    v_sub_f32 v{vT[0]}, v{U}, v{V}
    v_add_f32 v{vT[1]}, v{U}, v{V}
    s_mov_b32 exec_hi, 0
    v_cvt_pk_bf16_f32 v{U}, v{vT[0]}, v{vT[1]}
    buffer_store_short v{U}, v{vA}, {srdOut}, s{sT+4} offen
    buffer_store_short_d16_hi v{U}, v{vB}, {srdOut}, s{sT+4} offen
    s_mov_b32 exec_hi, -1
    """)
    a.label(f"{name}_done")


def standalone(a, name, nunits, which):
    kernel_header(a, name)
    v = RegAlloc(1, 256)
    t = v.alloc()
    a(f"""
    s_load_dwordx8 s[32:39], s[0:1], 24
    s_load_dwordx4 s[40:43], s[0:1], 56
    s_load_dwordx2 s[12:13], s[0:1], 80
    v_lshrrev_b32 v{t}, 6, v0
    v_and_b32 v0, 63, v0
    v_readfirstlane_b32 s3, v{t}
    s_lshl_b32 s20, s2, 2
    s_add_u32 s20, s20, s3
    s_cmp_ge_u32 s20, {nunits}
    s_cbranch_scc1 {name}_end
    s_mov_b32 s14, {WS_BYTES:#x}
    s_mov_b32 s15, 0x00020000
    s_waitcnt lgkmcnt(0)
    """)
    if which == "f0":
        a(f"s_mov_b32 s4, s32\ns_mov_b32 s5, s33\ns_mov_b32 s6, {2048*1280}\ns_mov_b32 s7, 0x00020000")
        f0_body(a, v, 20, 22, "s[4:7]", "s[12:15]")
    elif which == "g1":
        g1_body(a, v, 20, 22, 4, 38, 40, "s[12:15]")
    else:
        a(f"""s_mov_b32 s4, s34
        s_mov_b32 s5, s35
        s_mov_b32 s6, {2048*4096}
        s_mov_b32 s7, 0x00020000
        s_mov_b32 s8, s36
        s_mov_b32 s9, s37
        s_mov_b32 s10, {2048*4096}
        s_mov_b32 s11, 0x00020000
        s_mov_b32 s16, s42
        s_mov_b32 s17, s43
        s_mov_b32 s18, {2048*2560}
        s_mov_b32 s19, 0x00020000""")
        g2_body(a, v, name, 20, 22, "s[4:7]", "s[8:11]", "s[12:15]", "s[16:19]")
    a.label(f"{name}_end")
    a("s_endpgm")
    return v.hi
```

```python
from asmlib import *
from layout import *
from k_attn import kernel_header

OUT_T = 102400
OUT_LDS = 102400 + 4 * 16 * 176

def gen_out(a, name="out_kernel", stamp=False, opts=()):
    kernel_header(a, name)
    v = RegAlloc(1, 256)
    vT = [v.alloc() for _ in range(8)]
    wv = [v.alloc() for _ in range(5)]
    rm = v.alloc(); rx = v.alloc()
    acc = [v.alloc(4, 4) for _ in range(5)]
    Of = [v.alloc(4, 4) for _ in range(20)]
    fw = [[v.alloc(4, 4) for _ in range(5)] for _ in range(2)]
    sW = 3; sO = 20; sWo = 21; sM = 22; sT = 23; sTB = 30; sCB = 31
    a(f"""
    s_cmp_ge_u32 s2, 256
    s_cbranch_scc1 {name}_end
    {"s_memtime s[40:41]" if stamp else ""}
    {"s_memrealtime s[50:51]" if stamp else ""}
    s_load_dwordx2 s[4:5], s[0:1], 16
    s_load_dwordx2 s[8:9], s[0:1], 64
    s_load_dwordx2 s[12:13], s[0:1], 80
    v_lshrrev_b32 v{vT[0]}, 6, v0
    v_and_b32 v0, 63, v0
    v_readfirstlane_b32 s{sW}, v{vT[0]}
    s_and_b32 s{sT}, s2, 7
    s_lshr_b32 s{sT+1}, s2, 3
    s_and_b32 s{sT+2}, s{sT+1}, 3
    s_lshl_b32 s{sTB}, s{sT}, 2
    s_add_u32 s{sTB}, s{sTB}, s{sT+2}
    s_lshr_b32 s{sCB}, s{sT+1}, 2
    s_mov_b32 s6, {640*1280}
    s_mov_b32 s7, 0x00020000
    s_mov_b32 s10, {2048*2560}
    s_mov_b32 s11, 0x00020000
    s_mov_b32 s14, {WS_BYTES:#x}
    s_mov_b32 s15, 0x00020000
    s_lshl_b32 s{sO}, s{sTB}, 2
    s_add_u32 s{sO}, s{sO}, s{sW}
    s_mul_i32 s{sO}, s{sO}, 20480
    s_add_u32 s{sO}, s{sO}, {OF:#x}
    v_lshlrev_b32 v{vT[7]}, 4, v0
    s_mul_i32 s{sWo}, s{sCB}, 160
    s_mul_i32 s{sT}, s{sW}, {32*1280}
    s_add_u32 s{sWo}, s{sWo}, s{sT}
    s_mul_i32 s{sM}, s{sW}, 5120
    """)
    for i in range(5):
        a(f"v_add_u32 v{vT[0]}, {64*i}, v0")
        a(f"v_mul_u32_u24 v{vT[1]}, 6554, v{vT[0]}")
        a(f"v_lshrrev_b32 v{vT[1]}, 16, v{vT[1]}")
        a(f"v_mul_u32_u24 v{vT[1]}, 1120, v{vT[1]}")
        if i < 4:
            a(f"v_add_u32 v{wv[i]}, v{vT[1]}, v{vT[7]}")
        else:
            a(f"v_lshl_add_u32 v{wv[i]}, v{vT[0]}, 4, v{vT[1]}")
    a("s_waitcnt lgkmcnt(0)")
    for ks in range(20):
        if ks % 4 == 0 and ks:
            a(f"s_add_u32 s{sO}, s{sO}, 4096")
        a(f"buffer_load_dwordx4 {vr(Of[ks],4)}, v{vT[7]}, s[12:15], s{sO} offen offset:{(ks%4)*1024}")
    for g in range(5):
        a(f"s_add_u32 m0, s{sM}, {g*20480}")
        a(f"s_nop 0")
        for i in range(4):
            a(f"buffer_load_dwordx4 v{wv[i]}, s[4:7], s{sWo} offen offset:{1024*i} lds")
        a(f"s_add_u32 m0, s{sM}, {g*20480 + 4096}")
        a(f"s_nop 0")
        a(f"buffer_load_dwordx4 v{wv[4]}, s[4:7], s{sWo} offen lds")
        if g < 4:
            a(f"s_add_u32 s{sWo}, s{sWo}, {128*1280}")
    a(f"""
    v_bfe_u32 v{vT[0]}, v0, 2, 2
    v_and_b32 v{vT[1]}, 3, v0
    v_lshlrev_b32 v{vT[1]}, 3, v{vT[1]}
    v_lshrrev_b32 v{vT[2]}, 5, v0
    v_bfe_u32 v{vT[3]}, v0, 4, 1
    v_mul_u32_u24 v{vT[2]}, 20, v{vT[2]}
    v_lshl_add_u32 v{vT[2]}, v{vT[3]}, 2, v{vT[2]}
    v_add_u32 v{vT[2]}, v{vT[2]}, v{vT[0]}
    v_mul_u32_u24 v{vT[2]}, 160, v{vT[2]}
    v_add_u32 v{rm}, v{vT[2]}, v{vT[1]}
    v_lshrrev_b32 v{vT[2]}, 4, v0
    v_mul_u32_u24 v{vT[2]}, 40, v{vT[2]}
    v_add_u32 v{vT[2]}, v{vT[2]}, v{vT[0]}
    v_add_u32 v{vT[2]}, 16, v{vT[2]}
    v_mul_u32_u24 v{vT[2]}, 160, v{vT[2]}
    v_add_u32 v{rx}, v{vT[2]}, v{vT[1]}
    v_add_u32 v{vT[4]}, {8*6400}, v{rm}
    v_add_u32 v{vT[5]}, {2*25600}, v{rx}
    """)

    def reads(ks, buf):
        for nt in range(5):
            for r in range(2):
                if ks < 16:
                    reg, off = (rm, ks * 6400) if ks < 8 else (vT[4], (ks - 8) * 6400)
                    off += r * 8 * 160
                else:
                    e = ks - 16
                    reg, off = (rx, e * 25600) if e < 2 else (vT[5], (e - 2) * 25600)
                    off += r * 20 * 160
                a(f"ds_read_b64_tr_b16 {vr(fw[buf][nt]+2*r,2)}, v{reg} offset:{off + nt*32}")

    order = []
    done = set()
    sched = []
    for g in range(5):
        lim = 128 * (g + 1)
        ks_list = [ks for ks in range(16) if ks not in done and 40 * (ks + 1) <= lim]
        ks_list += [16 + e for e in range(4) if (16 + e) not in done and 160 * (e + 1) <= lim]
        done |= set(ks_list)
        sched.append(ks_list)
    flat = [(g, ks) for g in range(5) for ks in sched[g]]
    a(f"s_waitcnt vmcnt({5*4})")
    a("s_barrier")
    if stamp:
        a("s_memtime s[42:43]")
        a("s_memrealtime s[56:57]")
    reads(flat[0][1], 0)
    for n, (g, ks) in enumerate(flat):
        buf = n & 1
        if n + 1 < len(flat):
            g2, ks2 = flat[n + 1]
            if g2 != g:
                a(f"s_waitcnt vmcnt({5*(4-g2)})")
                a("s_barrier")
            reads(ks2, buf ^ 1)
            a("s_waitcnt lgkmcnt(10)")
        else:
            a("s_waitcnt lgkmcnt(0)")
        for nt in range(5):
            c = "0" if n == 0 else vr(acc[nt], 4)
            a(f"v_mfma_f32_16x16x32_bf16 {vr(acc[nt],4)}, {vr(fw[buf][nt],4)}, {vr(Of[ks],4)}, {c}")
    if stamp:
        a("s_memtime s[44:45]")
        a("s_memrealtime s[58:59]")
    a(f"""
    s_mul_i32 s{sT}, s{sW}, 2816
    s_add_u32 s{sT}, s{sT}, {OUT_T}
    v_and_b32 v{vT[0]}, 15, v0
    v_mul_u32_u24 v{vT[0]}, 176, v{vT[0]}
    v_lshrrev_b32 v{vT[1]}, 4, v0
    v_lshl_add_u32 v{vT[0]}, v{vT[1]}, 3, v{vT[0]}
    v_add_u32 v{vT[0]}, s{sT}, v{vT[0]}
    """)
    for i in range(3):
        a(f"v_add_u32 v{vT[1]}, {64*i}, v0")
        a(f"v_mul_u32_u24 v{vT[2]}, 6554, v{vT[1]}")
        a(f"v_lshrrev_b32 v{vT[2]}, 16, v{vT[2]}")
        a(f"v_add_u32 v{vT[3]}, v{vT[1]}, v{vT[2]}")
        a(f"v_lshl_add_u32 v{wv[i]}, v{vT[3]}, 4, s{sT}")
        a(f"v_mul_u32_u24 v{vT[2]}, 2400, v{vT[2]}")
        a(f"v_lshl_add_u32 v{vT[4+i]}, v{vT[1]}, 4, v{vT[2]}")
    a(f"""
    v_mov_b32 v{vT[1]}, 0x80000000
    v_cmp_gt_u32 vcc, 32, v0
    v_min_u32 v{wv[2]}, {OUT_LDS-16}, v{wv[2]}
    s_nop 0
    v_cndmask_b32 v{vT[6]}, v{vT[1]}, v{vT[6]}, vcc
    s_lshl_b32 s{sT+1}, s{sTB}, 2
    s_add_u32 s{sT+1}, s{sT+1}, s{sW}
    s_mul_i32 s{sT+1}, s{sT+1}, {16*2560}
    s_mul_i32 s{sT+2}, s{sCB}, 160
    s_add_u32 s{sT+1}, s{sT+1}, s{sT+2}
    """)
    for nt in range(5):
        A = acc[nt]
        a(f"v_cvt_pk_bf16_f32 v{A}, v{A}, v{A+1}")
        a(f"v_cvt_pk_bf16_f32 v{A+1}, v{A+2}, v{A+3}")
        a(f"ds_write_b64 v{vT[0]}, {vr(A,2)} offset:{nt*32}")
    a("s_waitcnt lgkmcnt(0)")
    for i in range(3):
        a(f"ds_read_b128 {vr(fw[0][i],4)}, v{wv[i]}")
    for i in range(3):
        a(f"s_waitcnt lgkmcnt({2-i})")
        a(f"buffer_store_dwordx4 {vr(fw[0][i],4)}, v{vT[4+i]}, s[8:11], s{sT+1} offen")
    if stamp:
        S0 = fw[1][0]
        a(f"""
        s_waitcnt vmcnt(0)
        s_memtime s[46:47]
        s_memrealtime s[52:53]
        s_waitcnt lgkmcnt(0)
        s_sub_u32 s42, s42, s40
        s_sub_u32 s44, s44, s40
        s_sub_u32 s46, s46, s40
        v_mov_b32 v{S0}, s42
        v_mov_b32 v{S0+1}, s44
        v_mov_b32 v{S0+2}, s46
        v_mov_b32 v{S0+3}, s50
        v_mov_b32 v{S0+4}, s52
        v_mov_b32 v{S0+5}, s56
        v_mov_b32 v{S0+6}, s58
        s_lshl_b32 s54, s2, 2
        s_add_u32 s54, s54, s{sW}
        s_lshl_b32 s54, s54, 5
        s_add_u32 s54, s54, {STAMP + 0x30000:#x}
        v_mov_b32 v{vT[0]}, 0
        s_mov_b64 exec, 1
        buffer_store_dwordx4 {vr(S0,4)}, v{vT[0]}, s[12:15], s54 offen
        buffer_store_dwordx4 {vr(S0+4,4)}, v{vT[0]}, s[12:15], s54 offen offset:16
        """)
    a.label(f"{name}_end")
    a("s_endpgm")
    return v.hi
```

```python
from asmlib import *
from layout import *
from k_attn import kernel_header
import struct

QKV_NS = 4
QKV_LDS = QKV_NS * 32768
T_OFF = 65536
T_PITCH = 272
C_SCALE = (20 ** -0.5) * 1.4426950408889634

def f2u(x):
    return struct.unpack("<I", struct.pack("<f", x))[0]

def gen_qkv(a, name="qkv_kernel", stamp=False, opts=()):
    NS = QKV_NS
    kernel_header(a, name)
    v = RegAlloc(1, 256)
    vT = [v.alloc() for _ in range(8)]
    xv = [v.alloc() for _ in range(4)]
    wv = [v.alloc() for _ in range(4)]
    xr = [[v.alloc() for _ in range(4)] for _ in range(2)]
    wr = [[v.alloc() for _ in range(2)] for _ in range(2)]
    acc = [[v.alloc(16, 4) for _ in range(2)] for _ in range(2)]
    fx = [[v.alloc(4, 4) for _ in range(2)] for _ in range(2)]
    fw = [[v.alloc(4, 4) for _ in range(2)] for _ in range(2)]
    sW = 3; sX = 20; sWo = 21; sM = 22; sT = 23; sHP = 30; sRB = 31
    lb = 1
    for o in opts:
        if o.startswith("mapB"): lb = int(o[4:])
    la = 5 - lb
    mapping = f"""s_and_b32 s{sT}, s2, 7
    s_lshr_b32 s{sT+1}, s2, 3
    s_and_b32 s{sT+2}, s{sT}, {(16 >> lb) - 1}
    s_lshl_b32 s{sHP}, s{sT+2}, {lb}
    s_and_b32 s{sT+2}, s{sT+1}, {(1 << lb) - 1}
    s_add_u32 s{sHP}, s{sHP}, s{sT+2}
    s_lshr_b32 s{sT+2}, s{sT}, {4 - lb}
    s_lshl_b32 s{sRB}, s{sT+2}, {la}
    s_lshr_b32 s{sT+2}, s{sT+1}, {lb}
    s_add_u32 s{sRB}, s{sRB}, s{sT+2}"""
    if "same" in opts:
        mapping = f"s_mov_b32 s{sHP}, 3\n s_mov_b32 s{sRB}, 5"
    a(f"""
    s_cmp_ge_u32 s2, 256
    s_cbranch_scc1 {name}_end
    {"s_memtime s[40:41]" if stamp else ""}
    {"s_memrealtime s[50:51]" if stamp else ""}
    s_load_dwordx4 s[16:19], s[0:1], 0
    s_load_dwordx2 s[12:13], s[0:1], 80
    v_lshrrev_b32 v{vT[0]}, 6, v0
    v_and_b32 v0, 63, v0
    v_readfirstlane_b32 s{sW}, v{vT[0]}
    {mapping}
    s_mov_b32 s6, {2048*1280}
    s_mov_b32 s7, 0x00020000
    s_mov_b32 s10, {640*3840}
    s_mov_b32 s11, 0x00020000
    s_mov_b32 s14, {WS_BYTES:#x}
    s_mov_b32 s15, 0x00020000
    s_lshl_b32 s{sX}, s{sRB}, 2
    s_add_u32 s{sX}, s{sX}, s{sW}
    s_mul_i32 s{sX}, s{sX}, {32*1280}
    s_mul_i32 s{sWo}, s{sW}, {16*3840}
    s_mul_i32 s{sT}, s{sHP}, 80
    s_add_u32 s{sWo}, s{sWo}, s{sT}
    s_lshl_b32 s{sM}, s{sW}, 12
    v_lshrrev_b32 v{vT[0]}, 3, v0
    v_mul_u32_u24 v{vT[0]}, 1280, v{vT[0]}
    v_lshrrev_b32 v{vT[1]}, 4, v0
    v_and_b32 v{vT[2]}, 7, v0
    v_xor_b32 v{vT[3]}, v{vT[2]}, v{vT[1]}
    v_xor_b32 v{vT[4]}, 4, v{vT[3]}
    v_lshl_add_u32 v{xv[0]}, v{vT[3]}, 4, v{vT[0]}
    v_lshl_add_u32 v{xv[1]}, v{vT[4]}, 4, v{vT[0]}
    v_add_u32 v{xv[2]}, {2*(10240-1024)}, v{xv[0]}
    v_add_u32 v{xv[3]}, {3*(10240-1024)}, v{xv[1]}
    v_add_u32 v{xv[1]}, {10240-1024}, v{xv[1]}
    v_and_b32 v{vT[2]}, 15, v0
    v_lshlrev_b32 v{vT[3]}, 2, v{vT[1]}
    v_xor_b32 v{vT[2]}, v{vT[2]}, v{vT[3]}
    v_min_u32 v{vT[2]}, 14, v{vT[2]}
    v_mul_u32_u24 v{vT[3]}, 52, v{vT[2]}
    v_lshrrev_b32 v{vT[3]}, 8, v{vT[3]}
    v_mul_u32_u24 v{vT[3]}, 1200, v{vT[3]}
    v_lshl_add_u32 v{vT[3]}, v{vT[2]}, 4, v{vT[3]}
    v_mul_u32_u24 v{vT[1]}, 3840, v{vT[1]}
    v_add_u32 v{wv[0]}, v{vT[1]}, v{vT[3]}
    v_add_u32 v{wv[1]}, {14336}, v{wv[0]}
    v_add_u32 v{wv[2]}, {2*14336}, v{wv[0]}
    v_add_u32 v{wv[3]}, {3*14336}, v{wv[0]}
    s_waitcnt lgkmcnt(0)
    {"s_memtime s[60:61]" if stamp else ""}
    s_mov_b32 s4, s16
    s_mov_b32 s5, s17
    s_mov_b32 s8, s18
    s_mov_b32 s9, s19
    """)

    rot = any(o.startswith("rot") for o in opts)
    if rot:
        mul = [int(o[3:]) for o in opts if o.startswith("rot")][0]
        a(f"""
        s_lshr_b32 s36, s2, 3
        s_mul_i32 s36, s36, {mul}
        s_mul_i32 s37, s36, 6554
        s_lshr_b32 s37, s37, 16
        s_mul_i32 s37, s37, 10
        s_sub_u32 s36, s36, s37
        s_lshl_b32 s37, s36, 7
        s_add_u32 s{sX}, s{sX}, s37
        s_mul_i32 s37, s36, {64*3840}
        s_add_u32 s{sWo}, s{sWo}, s37
        """)
    if "fakew" in opts:
        a(f"""
        v_and_b32 v{vT[2]}, 15, v0
        v_lshlrev_b32 v{vT[3]}, 4, v{vT[2]}
        v_add_u32 v{wv[0]}, v{vT[1]}, v{vT[3]}
        v_add_u32 v{wv[1]}, {14336}, v{wv[0]}
        v_add_u32 v{wv[2]}, {2*14336}, v{wv[0]}
        v_add_u32 v{wv[3]}, {3*14336}, v{wv[0]}
        s_min_u32 s37, s{sHP}, 14
        s_mul_i32 s37, s37, {256-80}
        s_add_u32 s{sWo}, s{sWo}, s37
        """)
    def dma(c):
        st = (c % NS) * 32768
        a(f"s_add_u32 m0, s{sM}, {st}")
        a(f"s_nop 0")
        for i in range(4):
            a(f"buffer_load_dwordx4 v{xv[i]}, s[4:7], s{sX} offen offset:{1024*i} lds" if "wonly" not in opts else f"buffer_load_dwordx4 v{xv[i]}, s[4:7], 0 offen offset:{1024*i} lds")
        a(f"s_add_u32 m0, s{sM}, {st + 16384}")
        a(f"s_add_u32 s{sX}, s{sX}, 128")
        for i in range(4):
            a(f"buffer_load_dwordx4 v{wv[i]}, s[8:11], s{sWo} offen offset:{1024*i} lds" if "xonly" not in opts else f"buffer_load_dwordx4 v{wv[i]}, s[8:11], 0 offen offset:{1024*i} lds")
        a(f"s_add_u32 s{sWo}, s{sWo}, {64*3840}")
        if rot:
            a(f"""
            s_add_u32 s36, s36, 1
            s_cmp_eq_u32 s36, 10
            s_cselect_b32 s37, 1280, 0
            s_cselect_b32 s38, {640*3840}, 0
            s_sub_u32 s{sX}, s{sX}, s37
            s_sub_u32 s{sWo}, s{sWo}, s38
            """)

    for c in range(NS):
        dma(c)
    if stamp:
        a("s_memtime s[62:63]")
    a(f"""
    v_and_b32 v{vT[0]}, 31, v0
    v_lshrrev_b32 v{vT[1]}, 5, v0
    v_bfe_u32 v{vT[2]}, v0, 1, 3
    v_xor_b32 v{vT[2]}, v{vT[2]}, v{vT[1]}
    s_and_b32 s{sT}, s{sW}, 1
    s_lshl_b32 s{sT}, s{sT}, 13
    v_lshl_add_u32 v{vT[0]}, v{vT[0]}, 7, s{sT}
    """)
    for ks in range(4):
        a(f"v_xor_b32 v{vT[3]}, {2*ks}, v{vT[2]}")
        a(f"v_lshl_add_u32 v{xr[0][ks]}, v{vT[3]}, 4, v{vT[0]}")
        a(f"v_add_u32 v{xr[1][ks]}, 0x10000, v{xr[0][ks]}")
    a(f"""
    v_bfe_u32 v{vT[2]}, v0, 2, 2
    v_lshl_add_u32 v{vT[3]}, v{vT[1]}, 3, v{vT[2]}
    v_lshlrev_b32 v{vT[3]}, 8, v{vT[3]}
    v_and_b32 v{vT[4]}, 1, v0
    v_lshl_add_u32 v{vT[3]}, v{vT[4]}, 3, v{vT[3]}
    v_add_u32 v{vT[3]}, 16384, v{vT[3]}
    v_bfe_u32 v{vT[4]}, v0, 4, 1
    v_bfe_u32 v{vT[5]}, v0, 1, 1
    v_lshl_add_u32 v{vT[4]}, v{vT[4]}, 1, v{vT[5]}
    v_lshl_add_u32 v{vT[4]}, v{vT[2]}, 2, v{vT[4]}
    s_lshr_b32 s{sT}, s{sW}, 1
    s_lshl_b32 s{sT}, s{sT}, 3
    v_xor_b32 v{vT[4]}, s{sT}, v{vT[4]}
    v_lshl_add_u32 v{wr[0][0]}, v{vT[4]}, 4, v{vT[3]}
    v_xor_b32 v{vT[4]}, 4, v{vT[4]}
    v_lshl_add_u32 v{wr[0][1]}, v{vT[4]}, 4, v{vT[3]}
    v_add_u32 v{wr[1][0]}, 0x10000, v{wr[0][0]}
    v_add_u32 v{wr[1][1]}, 0x10000, v{wr[0][1]}
    """)

    def reads(c, ks, buf):
        if "nocompute" in opts: return
        st = c % NS
        hi, lo = st >> 1, (st & 1) * 32768
        for tt in range(2):
            a(f"ds_read_b128 {vr(fx[buf][tt],4)}, v{xr[hi][ks]} offset:{lo + tt*4096}")
        for nt in range(2):
            for r in range(2):
                a(f"ds_read_b64_tr_b16 {vr(fw[buf][nt]+2*r,2)}, v{wr[hi][nt]} offset:{lo + (16*ks + 4*r)*256}")

    def mfmas(buf, first, which):
        if "nocompute" in opts: return
        for nt, tt in which:
            c = "0" if first else vr(acc[nt][tt], 16)
            a(f"v_mfma_f32_32x32x16_bf16 {vr(acc[nt][tt],16)}, {vr(fw[buf][nt],4)}, {vr(fx[buf][tt],4)}, {c}")

    NC = 10
    a(f"s_waitcnt vmcnt({8*(NS-1)})")
    a("s_barrier")
    if stamp:
        a("s_memtime s[42:43]")
        a("s_memrealtime s[56:57]")
    reads(0, 0, 0)
    step = 0
    for c in range(NC):
        for ks in range(4):
            buf = step & 1
            first = (step == 0)
            if ks < 3:
                reads(c, ks + 1, buf ^ 1)
                a("s_waitcnt lgkmcnt(6)")
                mfmas(buf, first, [(0, 0), (0, 1), (1, 0), (1, 1)])
            else:
                a("s_waitcnt lgkmcnt(0)")
                mfmas(buf, first, [(0, 0), (0, 1)])
                if c + 1 < NC:
                    issued = min(NC, c + NS)
                    a(f"s_waitcnt vmcnt({8*(issued - (c+2))})")
                    a("s_barrier")
                    if stamp and "nocompute" in opts:
                        a(f"s_memtime s[{64+2*c}:{65+2*c}]")
                    reads(c + 1, 0, buf ^ 1)
                mfmas(buf, first, [(1, 0), (1, 1)])
                if c + NS < NC:
                    dma(c + NS)
            step += 1
    if stamp:
        a("s_memtime s[44:45]")
        a("s_memrealtime s[58:59]")
    a(f"""
    v_and_b32 v{vT[0]}, 31, v0
    v_mul_u32_u24 v{vT[5]}, {T_PITCH}, v{vT[0]}
    v_lshrrev_b32 v{vT[1]}, 5, v0
    v_lshl_add_u32 v{vT[2]}, v{vT[1]}, 3, v{vT[5]}
    s_and_b32 s{sT}, s{sW}, 1
    s_mul_i32 s{sT}, s{sT}, {64*T_PITCH}
    s_lshr_b32 s{sT+1}, s{sW}, 1
    s_lshl_b32 s{sT+2}, s{sT+1}, 7
    s_add_u32 s{sT}, s{sT}, s{sT+2}
    s_add_u32 s{sT}, s{sT}, {T_OFF}
    v_add_u32 v{vT[2]}, s{sT}, v{vT[2]}
    s_cmp_eq_u32 s{sT+1}, 0
    s_cselect_b32 s{sT+3}, {f2u(C_SCALE):#x}, 1.0
    s_nop 4
    """)
    for nt in range(2):
        for tt in range(2):
            A = acc[nt][tt]
            n = 16 if nt == 0 else 4
            for i in range(n):
                a(f"v_mul_f32 v{A+i}, s{sT+3}, v{A+i}")
            for j in range(4):
                a(f"v_cvt_pk_bf16_f32 v{A+2*j}, v{A+4*j}, v{A+4*j+1}")
                a(f"v_cvt_pk_bf16_f32 v{A+2*j+1}, v{A+4*j+2}, v{A+4*j+3}")
            for j in range(4):
                a(f"ds_write_b64 v{vT[2]}, {vr(A+2*j,2)} offset:{tt*32*T_PITCH + nt*64 + j*16}")
    R = acc[0][0]
    a(f"""
    s_mul_i32 s{sT}, s{sW}, {32*T_PITCH}
    s_add_u32 s{sT}, s{sT}, {T_OFF}
    v_add_u32 v{vT[5]}, s{sT}, v{vT[5]}
    v_lshl_add_u32 v{vT[3]}, v{vT[1]}, 4, v{vT[5]}
    v_bfe_u32 v{vT[4]}, v0, 2, 2
    v_lshl_add_u32 v{vT[4]}, v{vT[1]}, 2, v{vT[4]}
    v_mul_u32_u24 v{vT[4]}, {T_PITCH}, v{vT[4]}
    v_bfe_u32 v{vT[6]}, v0, 4, 1
    v_lshl_add_u32 v{vT[4]}, v{vT[6]}, 5, v{vT[4]}
    v_and_b32 v{vT[6]}, 3, v0
    v_lshl_add_u32 v{vT[4]}, v{vT[6]}, 3, v{vT[4]}
    v_add_u32 v{vT[4]}, s{sT}, v{vT[4]}
    v_lshlrev_b32 v{xv[0]}, 4, v0
    v_lshlrev_b32 v{xv[1]}, 3, v0
    v_mov_b32 v{vT[7]}, 0x80000000
    v_cmp_gt_u32 vcc, 32, v0
    v_cmp_eq_u32 s[32:33], 20, v{vT[0]}
    v_cmp_gt_u32 s[34:35], 21, v{vT[0]}
    v_cndmask_b32 v{xv[2]}, v{vT[7]}, v{xv[1]}, vcc
    v_mul_u32_u24 v{vT[1]}, 21, v{vT[1]}
    v_add_u32 v{vT[1]}, v{vT[1]}, v{vT[0]}
    v_lshlrev_b32 v{vT[1]}, 4, v{vT[1]}
    v_cndmask_b32 v{xv[3]}, v{vT[7]}, v{vT[1]}, s[34:35]
    v_mov_b32 v{vT[6]}, 0x3f803f80
    v_mov_b32 v{vT[7]}, 0
    s_lshl_b32 s{sT}, s{sRB}, 2
    s_add_u32 s{sT}, s{sT}, s{sW}
    s_lshl_b32 s{sT+1}, s{sHP}, 7
    s_add_u32 s{sT}, s{sT}, s{sT+1}
    s_mul_i32 s{sT+1}, s{sT}, {Q_TILE}
    s_add_u32 s{sT+1}, s{sT+1}, {QF:#x}
    s_mul_i32 s{sT+2}, s{sT}, {KV_TILE}
    s_add_u32 s{sT+2}, s{sT+2}, {KVF:#x}
    s_add_u32 s{sT+3}, s{sT+1}, {64*Q_TILE}
    s_add_u32 s{sT+4}, s{sT+2}, {KV_HEAD}
    s_waitcnt lgkmcnt(0)
    s_barrier
    """)
    for hd in range(2):
        B = R + hd * 24
        qm, qe, km, ke, vb = (0, 32, 80, 112, 160) if hd == 0 else (48, 40, 128, 120, 200)
        a(f"ds_read_b128 {vr(B,4)}, v{vT[3]} offset:{km}")
        a(f"ds_read_b64 {vr(B+4,2)}, v{vT[5]} offset:{ke}")
        for g in range(2):
            for r in range(2):
                a(f"ds_read_b64_tr_b16 {vr(B+8+4*g+2*r,2)}, v{vT[4]} offset:{vb - 160 + 160 + (16*g + 8*r)*T_PITCH}")
        a(f"ds_read_b128 {vr(B+16,4)}, v{vT[3]} offset:{qm}")
        a(f"ds_read_b64 {vr(B+6,2)}, v{vT[5]} offset:{qe}")
    for hd in range(2):
        B = R + hd * 24
        sq, sk = (sT + 1, sT + 2) if hd == 0 else (sT + 3, sT + 4)
        a(f"s_waitcnt lgkmcnt({8*(1-hd)})")
        a(f"buffer_store_dwordx4 {vr(B,4)}, v{xv[0]}, s[12:15], s{sk} offen")
        a(f"v_cndmask_b32 v{B+4}, v{vT[6]}, v{B+4}, vcc")
        a(f"v_cndmask_b32 v{B+5}, v{vT[7]}, v{B+5}, vcc")
        for i in range(8):
            a(f"v_cndmask_b32 v{B+8+i}, v{B+8+i}, v{vT[6]}, s[32:33]")
        a(f"buffer_store_dwordx2 {vr(B+4,2)}, v{xv[1]}, s[12:15], s{sk} offen offset:1024")
        a(f"buffer_store_dwordx4 {vr(B+8,4)}, v{xv[3]}, s[12:15], s{sk} offen offset:1536")
        a(f"buffer_store_dwordx4 {vr(B+12,4)}, v{xv[3]}, s[12:15], s{sk} offen offset:{1536+672}")
        a(f"buffer_store_dwordx4 {vr(B+16,4)}, v{xv[0]}, s[12:15], s{sq} offen")
        a(f"buffer_store_dwordx2 {vr(B+6,2)}, v{xv[2]}, s[12:15], s{sq} offen offset:1024")
    if stamp:
        S0 = acc[1][1]
        a(f"""
        s_waitcnt vmcnt(0)
        s_memtime s[46:47]
        s_memrealtime s[52:53]
        s_waitcnt lgkmcnt(0)
        s_sub_u32 s42, s42, s40
        s_sub_u32 s44, s44, s40
        s_sub_u32 s46, s46, s40
        v_mov_b32 v{S0}, s42
        v_mov_b32 v{S0+1}, s44
        v_mov_b32 v{S0+2}, s46
        v_mov_b32 v{S0+3}, s50
        v_mov_b32 v{S0+4}, s52
        v_mov_b32 v{S0+5}, s56
        v_mov_b32 v{S0+6}, s58
        s_lshl_b32 s54, s2, 2
        s_add_u32 s54, s54, s{sW}
        s_lshl_b32 s54, s54, 5
        s_add_u32 s54, s54, {STAMP + 0x10000:#x}
        v_mov_b32 v{vT[0]}, 0
        s_mov_b64 exec, 1
        buffer_store_dwordx4 {vr(S0,4)}, v{vT[0]}, s[12:15], s54 offen
        buffer_store_dwordx4 {vr(S0+4,4)}, v{vT[0]}, s[12:15], s54 offen offset:16
        s_lshl_b32 s54, s2, 2
        s_add_u32 s54, s54, s{sW}
        s_lshl_b32 s54, s54, 6
        s_add_u32 s54, s54, {STAMP + 0x20000:#x}
        """)
        for i in range(11):
            a(f"s_sub_u32 s{60+2*i}, s{60+2*i}, s40")
            a(f"v_mov_b32 v{acc[0][0]+i}, s{60+2*i}")
        for i in range(3):
            a(f"buffer_store_dwordx4 {vr(acc[0][0]+4*i,4)}, v{vT[0]}, s[12:15], s54 offen offset:{16*i}")
    a.label(f"{name}_end")
    a("s_endpgm")
    return v.hi
```

```python
import sys
from asmlib import *
from layout import *
import k_attn, k_qkv, k_out, k_fnet

def build(which):
    a = Asm()
    hdr = []
    foot = []
    a.raw('.amdgcn_target "amdgcn-amd-amdhsa--gfx950"')
    a.raw(".text")
    if "qkv" in which:
        n = k_qkv.gen_qkv(a, "qkv_kernel", stamp=("stamp" in which), opts=which)
        hdr.append(f"; @launch kernel=qkv_kernel grid=(256,1,1) block=(256,1,1) lds={k_qkv.QKV_LDS}")
        foot.append(k_attn.kernel_footer("qkv_kernel", n))
    if "attn" in which:
        n = k_attn.gen_attn(a, "attn_kernel", stamp=("stamp" in which), vzero=("vzero" in which), offs=(100.0 if "off100" in which else 80.0 if "off80" in which else 48.0), abl=tuple(w for w in which if w.startswith("no")))
        hdr.append(f"; @launch kernel=attn_kernel grid=(256,1,1) block=(256,1,1) lds={k_attn.ATT_LDS_SIZE}")
        foot.append(k_attn.kernel_footer("attn_kernel", n))
    if "out" in which:
        n = k_out.gen_out(a, "out_kernel", stamp=("stamp" in which), opts=which)
        hdr.append(f"; @launch kernel=out_kernel grid=(256,1,1) block=(256,1,1) lds={k_out.OUT_LDS}")
        foot.append(k_attn.kernel_footer("out_kernel", n))
    for nm, nu in (("f0", 340), ("g1", 748), ("g2", 363)):
        if nm in which:
            n = k_fnet.standalone(a, nm + "_kernel", nu, nm)
            hdr.append(f"; @launch kernel={nm}_kernel grid=({(nu+3)//4},1,1) block=(256,1,1) lds=0")
            foot.append(k_attn.kernel_footer(nm + "_kernel", n))
    body = a.text()
    probs = check_hazards(body)
    for p in probs: print(p, file=sys.stderr)
    txt = "\n".join(hdr) + "\n" + body + '.section .rodata,"a"\n' + "".join(".p2align 6\n" + f for f in foot)
    return txt, len(probs)

if __name__ == "__main__":
    txt, n = build(sys.argv[2].split(","))
    open(sys.argv[1], "w").write(txt)
    print("hazards:", n)
```

```python
from asmlib import *
from layout import *


def kernel_footer(name, vgpr, sgpr=102):
    acc = (vgpr + 3) // 4 * 4
    return f""".amdhsa_kernel {name}
  .amdhsa_next_free_vgpr {vgpr}
  .amdhsa_next_free_sgpr {sgpr}
  .amdhsa_accum_offset {acc}
  .amdhsa_group_segment_fixed_size 0
  .amdhsa_kernarg_size 88
  .amdhsa_user_sgpr_count 2
  .amdhsa_user_sgpr_kernarg_segment_ptr 1
  .amdhsa_system_sgpr_workgroup_id_x 1
.end_amdhsa_kernel
"""


def kernel_header(a, name):
    a.raw(f".globl {name}")
    a.raw(".p2align 8")
    a.raw(f".type {name},@function")
    a.label(name)


ATT_LDS_M = 0
ATT_LDS_FLAG = 1024
ATT_LDS_MAX = 2048
ATT_LDS_O = 4096
ATT_LDS_SIZE = 4096 + 24576
OFFS = 48.0


def gen_attn(a, name="attn_kernel", NQ=4, D=4, U=4, NKT=32, stamp=False, vzero=False, offs=OFFS, abl=(), helper=False, opts=()):
    assert U % D == 0
    kernel_header(a, name)
    v = RegAlloc(1, 256)
    vK1 = v.alloc(); vK2 = v.alloc(); vV = v.alloc(); vL16 = v.alloc()
    vL31 = v.alloc()
    vT = [v.alloc() for _ in range(6)]
    Q1 = [v.alloc(4, 4) for _ in range(NQ)]
    Q2 = [v.alloc(2, 2) for _ in range(NQ)]
    O = [v.alloc(16, 4) for _ in range(NQ)]
    S = [v.alloc(16, 4) for _ in range(2)]
    P = v.alloc(8, 4)
    K1 = [v.alloc(4, 4) for _ in range(D)]
    K2 = [v.alloc(2, 2) for _ in range(D)]
    V0 = [v.alloc(4, 4) for _ in range(D)]
    V1 = [v.alloc(4, 4) for _ in range(D)]
    sWS = 4
    sW = 8
    sKV0 = 9
    sKV = 10
    sCnt = 11
    sQ = 12
    sT = 13
    sPass = 20
    sHP = 21; sRB = 22; sHead = 23
    sUp = 24
    sOff = 26

    a(f"""
    s_cmp_ge_u32 s2, 256
    s_cbranch_scc1 {name}_end
    {"s_memtime s[40:41]" if stamp else ""}
    {"s_memrealtime s[50:51]" if stamp else ""}
    s_load_dwordx2 s[4:5], s[0:1], 80
    v_lshrrev_b32 v{vT[0]}, 6, v0
    v_and_b32 v0, 63, v0
    v_readfirstlane_b32 s{sW}, v{vT[0]}
    s_and_b32 s{sT}, s2, 7
    s_lshr_b32 s{sT+1}, s2, 3
    s_and_b32 s{sT+2}, s{sT+1}, 1
    s_lshl_b32 s{sHP}, s{sT}, 1
    s_add_u32 s{sHP}, s{sHP}, s{sT+2}
    s_lshr_b32 s{sRB}, s2, 4
    s_lshr_b32 s{sT}, s{sW}, 1
    s_lshl_b32 s{sHead}, s{sHP}, 1
    s_add_u32 s{sHead}, s{sHead}, s{sT}
    s_mov_b32 s6, {WS_BYTES:#x}
    s_mov_b32 s7, 0x00020000
    s_mov_b32 s{sUp}, 0
    s_mov_b32 s{sUp+1}, -1
    s_mov_b32 s{sPass}, 0
    s_lshl_b32 s{sKV0}, s{sHP}, 6
    s_and_b32 s{sT+1}, s{sW}, 1
    s_mul_i32 s{sT+1}, s{sT+1}, {NKT}
    s_add_u32 s{sKV0}, s{sKV0}, s{sT+1}
    s_mul_i32 s{sKV0}, s{sKV0}, {KV_BLK}
    s_add_u32 s{sKV0}, s{sKV0}, {KVF:#x}
    s_lshl_b32 s{sQ}, s{sHP}, 6
    s_lshl_b32 s{sT+1}, s{sRB}, 2
    s_add_u32 s{sQ}, s{sQ}, s{sT+1}
    s_mul_i32 s{sQ}, s{sQ}, {Q_BLK}
    s_add_u32 s{sQ}, s{sQ}, {QF:#x}
    s_lshl_b32 s{sT+1}, s{sT}, 10
    s_lshl_b32 s{sT+2}, s{sT}, 3
    s_add_u32 s{sT+2}, s{sT+2}, 2048
    s_mul_i32 s{sT+3}, s{sT}, 1344
    s_add_u32 s{sT+3}, s{sT+3}, 2560
    s_add_u32 s{sT+4}, s{sT+3}, 320
    v_lshlrev_b32 v{vL16}, 4, v0
    v_add_u32 v{vK1}, s{sT+1}, v{vL16}
    v_add_u32 v{vK2}, s{sT+2}, v{vL16}
    v_and_b32 v{vT[0]}, 31, v0
    v_lshlrev_b32 v{vL31}, 2, v{vT[0]}
    v_lshrrev_b32 v{vT[1]}, 5, v0
    v_mul_u32_u24 v{vT[1]}, 21, v{vT[1]}
    v_add_u32 v{vT[0]}, v{vT[0]}, v{vT[1]}
    v_lshl_add_u32 v{vV}, v{vT[0]}, 4, s{sT+3}
    v_cmp_gt_u32 vcc, 84, v{vL31}
    v_mov_b32 v{vT[2]}, 0x80000000
    v_mov_b32 v{vT[3]}, s{sT+4}
    v_cndmask_b32 v{vV}, v{vT[2]}, v{vV}, vcc
    v_cmp_gt_u32 vcc, 32, v0
    s_nop 1
    v_cndmask_b32 v{vT[2]}, v{vT[2]}, v{vK2}, vcc
    v_cndmask_b32 v{vK2}, v{vT[3]}, v{vK2}, vcc
    s_waitcnt lgkmcnt(0)
    """)
    if helper:
        a(f"s_cmp_ge_u32 s{sW}, 4")
        a(f"s_cbranch_scc1 {name}_helper")

    def load_kv(buf, which):
        if which == 0:
            a(f"buffer_load_dwordx4 {vr(K1[buf],4)}, v{vK1}, s[4:7], s{sKV} offen")
        elif which == 1:
            a(f"buffer_load_dwordx2 {vr(K2[buf],2)}, v{vK2}, s[4:7], s{sKV} offen")
        elif which == 2:
            a(f"buffer_load_dwordx4 {vr(V0[buf],4)}, v{vV}, s[4:7], s{sKV} offen")
        else:
            a(f"buffer_load_dwordx4 {vr(V1[buf],4)}, v{vV}, s[4:7], s{sKV} offen offset:672")

    def qk1(sbuf, kb, q):
        a(f"v_mfma_f32_32x32x16_bf16 {vr(S[sbuf],16)}, {vr(K1[kb],4)}, {vr(Q1[q],4)}, 0")

    def qk2(sbuf, kb, q):
        a(f"v_mfma_f32_32x32x8_bf16 {vr(S[sbuf],16)}, {vr(K2[kb],2)}, {vr(Q2[q],2)}, {vr(S[sbuf],16)}")

    def prologue_kv_loads():
        a(f"s_mov_b32 s{sKV}, s{sKV0}")
        for b in range(D - 1):
            for wch in range(4):
                load_kv(b, wch)
            a(f"s_add_u32 s{sKV}, s{sKV}, {KV_BLK}")

    for q in range(NQ):
        a(f"s_add_u32 s{sT}, s{sQ}, {q*Q_BLK}")
        a(f"buffer_load_dwordx4 {vr(Q1[q],4)}, v{vK1}, s[4:7], s{sT} offen")
        a(f"buffer_load_dwordx2 {vr(Q2[q],2)}, v{vT[2]}, s[4:7], s{sT} offen")
    prologue_kv_loads()

    def maxtree(sbuf, dst, first):
        s = S[sbuf]
        i = 0
        if first:
            a(f"v_max3_f32 v{dst}, v{s}, v{s+1}, v{s+2}")
            a(f"v_max3_f32 v{dst}, v{dst}, v{s+3}, v{s+4}")
            i = 5
            while i + 1 < 16:
                a(f"v_max3_f32 v{dst}, v{dst}, v{s+i}, v{s+i+1}")
                i += 2
            a(f"v_max_f32 v{dst}, v{dst}, v{s+15}")
        else:
            for i in range(0, 16, 2):
                a(f"v_max3_f32 v{dst}, v{dst}, v{s+i}, v{s+i+1}")

    def cross_half_max(r, tmp):
        a(f"v_mov_b32 v{tmp}, v{r}")
        a("s_nop 1")
        a(f"v_permlane32_swap_b32 v{r}, v{tmp}")
        a(f"v_max_f32 v{r}, v{r}, v{tmp}")

    def pack_negm(r, tmp):
        a(f"v_sub_f32 v{r}, s{sOff}, v{r}")
        a(f"v_cvt_pk_bf16_f32 v{tmp}, v{r}, v{r}")
        a(f"v_and_b32 v{tmp}, 0xffff0000, v{tmp}")
        a(f"v_sub_f32 v{tmp}, v{r}, v{tmp}")
        a(f"v_cvt_pk_bf16_f32 v{r}, v{r}, v{tmp}")

    import struct
    negoff = struct.unpack("<I", struct.pack("<f", -offs))[0]
    a(f"s_mov_b32 s{sOff}, {negoff:#x}")
    a(f"s_waitcnt vmcnt({4*(D-1)-6})")
    a(f"s_and_b32 s{sT}, s{sW}, 1")
    a(f"s_cmp_eq_u32 s{sT}, 0")
    a(f"s_cbranch_scc0 {name}_mx1")
    for g in range(2):
        if g == 1:
            a.label(f"{name}_mx1")
        for i in range(2):
            q = 2 * g + i
            qk1(0, 0, q); qk2(0, 0, q)
            qk1(1, 1, q); qk2(1, 1, q)
            a("s_nop 7")
            a("s_nop 2")
            maxtree(0, vT[i], True)
            a("s_nop 2")
            maxtree(1, vT[i], False)
        if g == 0:
            a(f"s_branch {name}_mxj")
    a.label(f"{name}_mxj")
    for i in range(2):
        cross_half_max(vT[i], vT[3])
        pack_negm(vT[i], vT[3])
    a(f"""
    s_lshl_b32 s{sT}, s{sW}, 8
    v_add_u32 v{vT[3]}, s{sT}, v{vL31}
    ds_write_b32 v{vT[3]}, v{vT[0]} offset:{ATT_LDS_M}
    ds_write_b32 v{vT[3]}, v{vT[1]} offset:{ATT_LDS_M+128}
    v_mov_b32 v{vT[4]}, 0
    ds_write_b32 v{vT[4]}, v{vT[4]} offset:{ATT_LDS_FLAG}
    """)
    a.label(f"{name}_start")
    for q in range(NQ):
        for i in range(16):
            a(f"v_mov_b32 v{O[q]+i}, 0")
    for i in range(4, 8):
        a(f"v_mov_b32 v{P+i}, 0")
    for i in range(4):
        a(f"v_mov_b32 v{V1[D-1]+i}, 0")
    a(f"""
    s_waitcnt lgkmcnt(0)
    s_barrier
    s_lshr_b32 s{sT}, s{sW}, 1
    s_lshl_b32 s{sT}, s{sT}, 9
    v_add_u32 v{vT[3]}, s{sT}, v{vL31}
    s_mov_b64 exec, s[{sUp}:{sUp+1}]
    """)
    for q in range(NQ):
        a(f"ds_read_b32 v{Q2[q]}, v{vT[3]} offset:{ATT_LDS_M + q*128}")
    a(f"""
    s_mov_b64 exec, -1
    s_mov_b32 s{sCnt}, {NKT//U}
    s_waitcnt vmcnt({4*(D-2)}) lgkmcnt(0)
    """)
    if stamp:
        a("s_memtime s[42:43]")
        a("s_memrealtime s[56:57]")
    qk1(0, 0, 0)
    qk2(0, 0, 0)
    a("s_nop 7")
    a("s_nop 2")
    a.raw(".p2align 5")
    a.label(f"{name}_loop")
    NT = U * NQ
    for t in range(NT):
        kt, q = divmod(t, NQ)
        ktn, qn = divmod(t + 1, NQ)
        ktp, qp = divmod(t - 1, NQ)
        s = S[t & 1]
        sn = (t + 1) & 1

        def ex(lo):
            if "noqk" in abl:
                for i in range(lo, lo + 4):
                    a(f"v_exp_f32 v{200+i-lo}, v{s+i}")
                a(f"v_cvt_pk_bf16_f32 v{P+lo//2}, v200, v201")
                a(f"v_cvt_pk_bf16_f32 v{P+lo//2+1}, v202, v203")
                return
            for i in range(lo, lo + 4):
                if "noexp" in abl:
                    if "nopfill" in abl: a("s_nop 1")
                else:
                    a(f"v_exp_f32 v{s+i}, v{s+i}")
            if "nocvt" in abl:
                if "nopfill" in abl: a("s_nop 1")
                return
            a(f"v_cvt_pk_bf16_f32 v{P+lo//2}, v{s+lo}, v{s+lo+1}")
            a(f"v_cvt_pk_bf16_f32 v{P+lo//2+1}, v{s+lo+2}, v{s+lo+3}")

        if q == NQ - 1:
            a(f"s_waitcnt vmcnt({4*(D-2)})")
        if "noqk" not in abl: qk1(sn, ktn % D, qn)
        ex(0)
        if "noqk" not in abl and "noqk2" not in abl: qk2(sn, ktn % D, qn)
        ex(4)
        if "nopv" not in abl: a(f"v_mfma_f32_32x32x16_bf16 {vr(O[qp],16)}, {vr(V1[ktp % D],4)}, {vr(P+4,4)}, {vr(O[qp],16)}")
        ex(8)
        if "nopv" not in abl: a(f"v_mfma_f32_32x32x16_bf16 {vr(O[q],16)}, {vr(V0[kt % D],4)}, {vr(P,4)}, {vr(O[q],16)}")
        lb = (kt - 1) % D
        if NQ >= 4:
            if q == 0:
                load_kv(lb, 0); load_kv(lb, 1)
            elif q == 1:
                load_kv(lb, 2); load_kv(lb, 3)
                a(f"s_add_u32 s{sKV}, s{sKV}, {KV_BLK}")
        if t == NT - 1:
            a(f"s_sub_u32 s{sCnt}, s{sCnt}, 1")
            a(f"s_cmp_lg_u32 s{sCnt}, 0")
        ex(12)
    a(f"s_cbranch_scc1 {name}_loop")
    if stamp:
        a("s_memtime s[44:45]")
        a("s_memrealtime s[58:59]")
    a("s_nop 0")
    a(f"v_mfma_f32_32x32x16_bf16 {vr(O[NQ-1],16)}, {vr(V1[(U-1) % D],4)}, {vr(P+4,4)}, {vr(O[NQ-1],16)}")
    a(f"""
    s_mul_i32 s{sT}, s{sW}, 6144
    v_add_u32 v{vT[0]}, s{sT}, v{vL16}
    s_xor_b32 s{sT+1}, s{sW}, 1
    s_mul_i32 s{sT+1}, s{sT+1}, 6144
    v_add_u32 v{vT[1]}, s{sT+1}, v{vL16}
    s_and_b32 s{sT}, s{sW}, 1
    s_cmp_eq_u32 s{sT}, 0
    s_nop 7
    s_cbranch_scc1 {name}_mg0
    """)
    def merge(keep, send, lab):
        for i, q in enumerate(send):
            for j in range(3):
                a(f"ds_write_b128 v{vT[0]}, {vr(O[q]+4*j,4)} offset:{ATT_LDS_O + (i*3+j)*1024}")
        a("s_waitcnt lgkmcnt(0)")
        a("s_barrier")
        for i in range(2):
            for j in range(3):
                a(f"ds_read_b128 {vr(S[i]+4*j,4)}, v{vT[1]} offset:{ATT_LDS_O + (i*3+j)*1024}")
        a("s_waitcnt lgkmcnt(0)")
        for i, q in enumerate(keep):
            for j in range(12):
                a(f"v_add_f32 v{S[i]+j}, v{S[i]+j}, v{O[q]+j}")
    merge([2, 3], [0, 1], "1")
    a(f"s_branch {name}_mgj")
    a.label(f"{name}_mg0")
    merge([0, 1], [2, 3], "0")
    a.label(f"{name}_mgj")
    a(f"s_mov_b32 s{sT+4}, 0x76800000")
    a(f"s_mov_b32 s{sT+5}, 0x7f000000")
    for i in range(2):
        s = S[i]
        a(f"""
        v_mov_b32 v{vT[2]}, v{s+8}
        v_mov_b32 v{vT[3]}, v{s+8}
        s_nop 1
        v_permlane32_swap_b32 v{vT[2]}, v{vT[3]}
        """)
        a(f"v_cmp_ngt_f32 s[{28+2*i}:{29+2*i}], s{sT+4}, v{vT[3]}")
        a(f"v_rcp_f32 v{vT[3]}, v{vT[3]}")
        a("s_nop 0")
        for j in range(12):
            a(f"v_mul_f32 v{s+j}, v{s+j}, v{vT[3]}")
        a(f"v_maximum3_f32 v{vT[4]}, |v{s}|, |v{s+1}|, |v{s+2}|")
        for j in (3, 5):
            a(f"v_maximum3_f32 v{vT[4]}, v{vT[4]}, |v{s+j}|, |v{s+j+1}|")
        a(f"v_maximum3_f32 v{vT[4]}, v{vT[4]}, |v{s+7}|, |v{s+8}|")
        a(f"v_maximum3_f32 v{vT[5]}, |v{s+9}|, |v{s+10}|, |v{s+11}|")
        a(f"v_cndmask_b32 v{vT[5]}, v{vT[5]}, v{vT[4]}, s[{sUp}:{sUp+1}]")
        a(f"v_maximum3_f32 v{vT[4]}, v{vT[4]}, v{vT[5]}, v{vT[5]}")
        a(f"v_cmp_ngt_f32 s[{32+2*i}:{33+2*i}], s{sT+5}, v{vT[4]}")
    a(f"""
    s_nop 0
    s_or_b64 s[28:29], s[28:29], s[30:31]
    s_or_b64 s[32:33], s[32:33], s[34:35]
    s_or_b64 s[28:29], s[28:29], s[32:33]
    s_cmp_eq_u32 s{sPass}, 0
    s_cbranch_scc0 {name}_store
    s_cmp_eq_u64 s[28:29], 0
    s_cbranch_scc1 {name}_noflag
    v_mov_b32 v{vT[4]}, 0
    v_mov_b32 v{vT[5]}, 1
    ds_write_b32 v{vT[4]}, v{vT[5]} offset:{ATT_LDS_FLAG}
    """)
    a.label(f"{name}_noflag")
    a(f"""
    s_waitcnt lgkmcnt(0)
    s_barrier
    v_mov_b32 v{vT[4]}, 0
    ds_read_b32 v{vT[4]}, v{vT[4]} offset:{ATT_LDS_FLAG}
    s_waitcnt lgkmcnt(0)
    v_readfirstlane_b32 s{sT}, v{vT[4]}
    s_nop 0
    s_cmp_lg_u32 s{sT}, 0
    {"" if abl else f"s_cbranch_scc1 {name}_fallback"}
    """)
    a.label(f"{name}_store")
    a(f"""
    v_and_b32 v{vT[0]}, 15, v0
    v_lshlrev_b32 v{vT[0]}, 4, v{vT[0]}
    v_bfe_u32 v{vT[1]}, v0, 4, 1
    v_mul_u32_u24 v{vT[1]}, 20480, v{vT[1]}
    v_add_u32 v{vT[0]}, v{vT[0]}, v{vT[1]}
    v_lshrrev_b32 v{vT[1]}, 5, v0
    v_lshlrev_b32 v{vT[1]}, 8, v{vT[1]}
    v_add_u32 v{vT[1]}, v{vT[0]}, v{vT[1]}
    v_mov_b32 v{vT[2]}, 0x80000000
    v_cndmask_b32 v{vT[0]}, v{vT[0]}, v{vT[2]}, s[{sUp}:{sUp+1}]
    s_lshl_b32 s{sT}, s{sRB}, 3
    s_and_b32 s{sT+1}, s{sW}, 1
    s_lshl_b32 s{sT+1}, s{sT+1}, 2
    s_add_u32 s{sT}, s{sT}, s{sT+1}
    s_mul_i32 s{sT}, s{sT}, 20480
    s_add_u32 s{sT}, s{sT}, {OF:#x}
    s_lshr_b32 s{sT+2}, s{sW}, 1
    s_lshl_b32 s{sT+3}, s{sHP}, 10
    s_add_u32 s{sT+3}, s{sT+3}, s{sT}
    s_lshl_b32 s{sT+4}, s{sT+2}, 9
    s_add_u32 s{sT+3}, s{sT+3}, s{sT+4}
    s_lshl_b32 s{sT+4}, s{sHP}, 8
    s_add_u32 s{sT+4}, s{sT+4}, 16384
    s_add_u32 s{sT+4}, s{sT+4}, s{sT}
    s_lshl_b32 s{sT+5}, s{sT+2}, 3
    s_add_u32 s{sT+4}, s{sT+4}, s{sT+5}
    """)
    for i in range(2):
        s = S[i]
        for j in range(6):
            a(f"v_cvt_pk_bf16_f32 v{s+j}, v{s+2*j}, v{s+2*j+1}")
        a(f"buffer_store_dwordx4 {vr(s,4)}, v{vT[1]}, s[4:7], s{sT+3} offen")
        a(f"buffer_store_dwordx2 {vr(s+4,2)}, v{vT[0]}, s[4:7], s{sT+4} offen")
        if i == 0:
            a(f"s_add_u32 s{sT+3}, s{sT+3}, 40960")
            a(f"s_add_u32 s{sT+4}, s{sT+4}, 40960")
    if stamp:
        a(f"""
        s_waitcnt vmcnt(0)
        s_memtime s[46:47]
        s_memrealtime s[52:53]
        s_waitcnt lgkmcnt(0)
        s_sub_u32 s42, s42, s40
        s_sub_u32 s44, s44, s40
        s_sub_u32 s46, s46, s40
        v_mov_b32 v{S[0]}, s42
        v_mov_b32 v{S[0]+1}, s44
        v_mov_b32 v{S[0]+2}, s46
        v_mov_b32 v{S[0]+3}, s50
        v_mov_b32 v{S[0]+4}, s52
        v_mov_b32 v{S[0]+5}, s56
        v_mov_b32 v{S[0]+6}, s58
        s_lshl_b32 s54, s2, 2
        s_add_u32 s54, s54, s{sW}
        s_lshl_b32 s54, s54, 5
        s_add_u32 s54, s54, {STAMP:#x}
        v_mov_b32 v{vT[0]}, 0
        s_mov_b64 exec, 1
        buffer_store_dwordx4 {vr(S[0],4)}, v{vT[0]}, s[4:7], s54 offen
        buffer_store_dwordx4 {vr(S[0]+4,4)}, v{vT[0]}, s[4:7], s54 offen offset:16
        """)
    a.label(f"{name}_end")
    a("s_endpgm")

    a.label(f"{name}_fallback")
    a(f"""
    s_mov_b32 s{sPass}, 1
    s_mov_b32 s{sOff}, 0
    s_waitcnt vmcnt(0)
    s_mov_b64 exec, s[{sUp}:{sUp+1}]
    """)
    for q in range(NQ):
        a(f"v_mov_b32 v{Q2[q]}, 0")
    a("s_mov_b64 exec, -1")
    for q in range(NQ):
        a(f"v_mov_b32 v{O[0]+q}, 0xff800000")
    a(f"s_mov_b32 s{sKV}, s{sKV0}")
    a(f"s_mov_b32 s{sCnt}, {NKT}")
    a.label(f"{name}_fbloop")
    load_kv(0, 0); load_kv(0, 1)
    a(f"s_add_u32 s{sKV}, s{sKV}, {KV_BLK}")
    a("s_waitcnt vmcnt(0)")
    for q in range(NQ):
        qk1(0, 0, q); qk2(0, 0, q)
        a("s_nop 7")
        a("s_nop 3")
        maxtree(0, O[0] + q, False)
    a(f"""
    s_sub_u32 s{sCnt}, s{sCnt}, 1
    s_cmp_lg_u32 s{sCnt}, 0
    s_cbranch_scc1 {name}_fbloop
    s_lshl_b32 s{sT}, s{sW}, 9
    v_add_u32 v{vT[3]}, s{sT}, v{vL31}
    """)
    for q in range(NQ):
        cross_half_max(O[0] + q, vT[0])
        a(f"ds_write_b32 v{vT[3]}, v{O[0]+q} offset:{ATT_LDS_MAX + q*128}")
    a(f"""
    s_waitcnt lgkmcnt(0)
    s_barrier
    s_xor_b32 s{sT}, s{sW}, 1
    s_lshl_b32 s{sT}, s{sT}, 9
    v_add_u32 v{vT[3]}, s{sT}, v{vL31}
    """)
    for q in range(NQ):
        a(f"ds_read_b32 v{O[1]+q}, v{vT[3]} offset:{ATT_LDS_MAX + q*128}")
    a("s_waitcnt lgkmcnt(0)")
    a(f"s_lshr_b32 s{sT}, s{sW}, 1")
    a(f"s_lshl_b32 s{sT}, s{sT}, 9")
    a(f"v_add_u32 v{vT[3]}, s{sT}, v{vL31}")
    for q in range(NQ):
        a(f"v_max_f32 v{O[0]+q}, v{O[0]+q}, v{O[1]+q}")
        pack_negm(O[0] + q, vT[0])
        a(f"ds_write_b32 v{vT[3]}, v{O[0]+q} offset:{ATT_LDS_M + q*128}")
    prologue_kv_loads()
    a(f"s_branch {name}_start")
    hi = max(v.hi, 208) if abl else v.hi
    if helper:
        import k_help2
        a.label(f"{name}_helper")
        hi = max(hi, k_help2.gen_helper(a, name + "_h", sW, opts))
    return hi
```

```python
from asmlib import *
from layout import *

OOB = 0x80000000
G2_LDS = 28672
NF0 = 680
SC = " sc0 sc1"


def poll(a, name, vaddr, vtmp, srdWS, soff, wide, sleep=8):
    a(f"s_mov_b32 s60, 0x40000")
    a.label(name)
    if wide:
        a(f"buffer_load_dwordx2 {vr(vtmp,2)}, v{vaddr}, {srdWS}, s{soff} offen{SC}")
        a("s_waitcnt vmcnt(0)")
        a(f"v_min_u32 v{vtmp}, v{vtmp}, v{vtmp+1}")
    else:
        a(f"buffer_load_dword v{vtmp}, v{vaddr}, {srdWS}, s{soff} offen{SC}")
        a("s_waitcnt vmcnt(0)")
    a(f"""
    v_cmp_eq_u32 vcc, 0, v{vtmp}
    s_sub_u32 s60, s60, 1
    s_cbranch_scc1 {name}_x
    s_cbranch_vccz {name}_x
    s_sleep {sleep}
    s_branch {name}
    """)
    a.label(name + "_x")


def flag_init(a, vT, sT, srdWS):
    pass


def gen_helper(a, name, sW, opts=()):
    v = RegAlloc(1, 256)
    vT = [v.alloc() for _ in range(8)]
    vL16 = v.alloc()
    sJ = 9; sU = 10; sT = 11
    WS = "s[4:7]"
    a(f"""
    s_load_dwordx8 s[32:39], s[0:1], 24
    s_load_dwordx4 s[40:43], s[0:1], 56
    s_sub_u32 s{sJ}, s{sW}, 4
    v_lshlrev_b32 v{vL16}, 4, v0
    s_waitcnt lgkmcnt(0)
    s_mov_b32 s20, s32
    s_mov_b32 s21, s33
    s_mov_b32 s22, {2048*1280}
    s_mov_b32 s23, 0x00020000
    s_mov_b32 s28, s34
    s_mov_b32 s29, s35
    s_mov_b32 s30, {2048*4096}
    s_mov_b32 s31, 0x00020000
    s_mov_b32 s44, s36
    s_mov_b32 s45, s37
    s_mov_b32 s46, {2048*4096}
    s_mov_b32 s47, 0x00020000
    s_mov_b32 s48, s42
    s_mov_b32 s49, s43
    s_mov_b32 s50, {2048*2560}
    s_mov_b32 s51, 0x00020000
    """)
    a(f"""
    s_lshl_b32 s52, s{sJ}, 8
    s_add_u32 s52, s52, s2
    s_mov_b32 s53, s52
    s_sub_u32 s{sT}, 511, s2
    s_cmp_eq_u32 s{sJ}, 2
    s_cselect_b32 s54, s{sT}, 0x7fff
    s_cmp_eq_u32 s{sJ}, 3
    s_cselect_b32 s54, s2, s54
    """)
    m0 = v.mark()
    st_on = "stamp" in opts
    def st(i):
        if st_on:
            a(f"s_memrealtime s[{72+2*i}:{73+2*i}]")
    if st_on:
        for i in range(10):
            a(f"s_mov_b32 s{72+2*i}, 0")
    off = [v.alloc() for _ in range(4)]
    X = [[v.alloc(2, 2) for _ in range(2)] for _ in range(4)]
    Y = [v.alloc(2, 2) for _ in range(8)]
    zb = v.alloc(32, 4)
    z = [zb + 2 * i for i in range(16)]
    Mf = [v.alloc(4, 4) for _ in range(20)]
    a(f"""
    s_cmp_ge_u32 s52, {NF0}
    s_cbranch_scc1 {name}_nof0a
    s_mul_i32 s{sT}, s52, 1639
    s_lshr_b32 s{sT}, s{sT}, 16
    s_mul_i32 s{sT+1}, s{sT}, 40
    s_sub_u32 s{sT+1}, s52, s{sT+1}
    v_and_b32 v{vT[0]}, 19, v0
    v_lshrrev_b32 v{vT[1]}, 1, v0
    v_and_b32 v{vT[1]}, 4, v{vT[1]}
    v_lshlrev_b32 v{vT[2]}, 1, v0
    v_and_b32 v{vT[2]}, 8, v{vT[2]}
    v_or3_b32 v{vT[0]}, v{vT[0]}, v{vT[1]}, v{vT[2]}
    s_lshl_b32 s{sT+2}, s{sT}, 5
    v_add_u32 v{vT[0]}, s{sT+2}, v{vT[0]}
    v_lshrrev_b32 v{vT[1]}, 5, v0
    v_lshlrev_b32 v{vT[1]}, 4, v{vT[1]}
    v_mul_u32_u24 v{vT[2]}, 1280, v{vT[0]}
    v_add_u32 v{off[0]}, v{vT[2]}, v{vT[1]}
    v_sub_u32 v{off[1]}, v{vT[1]}, v{vT[2]}
    v_add_u32 v{off[2]}, {1024*1280}, v{off[1]}
    v_add_u32 v{off[1]}, {2048*1280}, v{off[1]}
    v_add_u32 v{off[3]}, {1024*1280}, v{off[0]}
    v_mov_b32 v{vT[3]}, {OOB:#x}
    v_cmp_lt_u32 vcc, 512, v{vT[0]}
    s_lshr_b32 s{sT+2}, s{sT+1}, 1
    s_and_b32 s{sT+3}, s{sT+1}, 1
    v_cndmask_b32 v{off[0]}, v{off[0]}, v{vT[3]}, vcc
    v_cndmask_b32 v{off[1]}, v{off[1]}, v{vT[3]}, vcc
    v_cmp_lt_u32 vcc, 511, v{vT[0]}
    s_lshl_b32 s{sT+3}, s{sT+3}, 3
    s_lshl_b32 s{sT+4}, s{sT+2}, 5
    v_cndmask_b32 v{off[2]}, v{off[2]}, v{vT[3]}, vcc
    v_cndmask_b32 v{off[3]}, v{off[3]}, v{vT[3]}, vcc
    v_cmp_eq_u32 vcc, 0, v{vT[0]}
    s_add_u32 s{sT+4}, s{sT+4}, s{sT+3}
    s_mul_i32 s55, s{sT}, 20
    v_cndmask_b32 v{off[3]}, v{off[3]}, v{vT[3]}, vcc
    s_add_u32 s55, s55, s{sT+2}
    s_lshl_b32 s55, s55, 10
    s_add_u32 s55, s55, s{sT+3}
    s_add_u32 s55, s55, {XF:#x}
    s_lshl_b32 s56, s{sT}, 6
    s_add_u32 s56, s56, s{sT+1}
    s_lshl_b32 s56, s56, 2
    s_add_u32 s56, s56, {FLG0:#x}
    """)
    for i in range(4):
        for hf in range(2):
            a(f"buffer_load_dwordx2 {vr(X[i][hf],2)}, v{off[i]}, s[20:23], s{sT+4} offen offset:{640*hf}")
    a.label(f"{name}_nof0a")
    sC, sST, sP, sET = 57, 58, 59, 61
    a(f"""
    s_cmp_ge_u32 s53, 748
    s_cbranch_scc1 {name}_nog1a
    s_mul_i32 s{sC}, s53, 5609
    s_lshr_b32 s{sC}, s{sC}, 20
    s_mul_i32 s{sT+1}, s{sC}, 187
    s_sub_u32 s{sT+1}, s53, s{sT+1}
    s_mul_i32 s{sST}, s{sT+1}, 5958
    s_lshr_b32 s{sST}, s{sST}, 16
    s_mul_i32 s{sT+3}, s{sST}, 11
    s_sub_u32 s{sET}, s{sT+1}, s{sT+3}
    s_cmp_ge_u32 s{sET}, 6
    s_cselect_b32 s{sP}, 1, 0
    s_cselect_b32 s{sT+5}, 6, 0
    s_sub_u32 s{sET}, s{sET}, s{sT+5}
    s_cmp_ge_u32 s{sC}, 2
    s_cselect_b32 s24, s40, s38
    s_cselect_b32 s25, s41, s39
    s_mov_b32 s26, {640*1280}
    s_mov_b32 s27, 0x00020000
    s_lshl_b32 s{sT+5}, s{sET}, 6
    s_add_u32 s{sT+5}, s{sT+5}, s{sP}
    v_and_b32 v{vT[4]}, 31, v0
    v_lshl_add_u32 v{vT[4]}, v{vT[4]}, 1, s{sT+5}
    v_lshrrev_b32 v{vT[5]}, 5, v0
    v_mul_u32_u24 v{vT[6]}, 1280, v{vT[4]}
    v_lshl_add_u32 v{vT[6]}, v{vT[5]}, 4, v{vT[6]}
    """)
    for ks in range(20):
        a(f"buffer_load_dwordx4 {vr(Mf[ks],4)}, v{vT[6]}, s[24:27], 0 offen offset:{32*ks}")
    a.label(f"{name}_nog1a")
    st(0)
    a("s_barrier")
    st(1)
    if "hprio" in opts:
        a("s_setprio 1")
    a(f"""
    s_cmp_ge_u32 s52, {NF0}
    s_cbranch_scc1 {name}_nof0b
    s_waitcnt vmcnt(20)
    """)
    st(2)
    for dw in range(2):
        for i in range(4):
            for hf in range(2):
                d = z[2 * i + hf]
                a(f"v_lshlrev_b32 v{d}, 16, v{X[i][hf]+dw}")
                a(f"v_and_b32 v{d+1}, 0xffff0000, v{X[i][hf]+dw}")
        def pk(op, d, x, y):
            neg = " neg_lo:[0,1] neg_hi:[0,1]" if op == "-" else ""
            a(f"v_pk_add_f32 {vr(d,2)}, {vr(x,2)}, {vr(y,2)}{neg}")
        for i in range(4):
            pk("+", z[8 + 2 * i], z[2 * i], z[2 * i + 1])
            pk("-", z[8 + 2 * i + 1], z[2 * i], z[2 * i + 1])
        for p in range(2):
            pk("+", z[4 * p + 0], z[8 + p], z[10 + p])
            pk("+", z[4 * p + 1], z[12 + p], z[14 + p])
            pk("-", z[4 * p + 2], z[8 + p], z[10 + p])
            pk("-", z[4 * p + 3], z[12 + p], z[14 + p])
        for p in range(2):
            pk("+", z[8 + 0 + p], z[4 * p], z[4 * p + 1])
            pk("-", z[8 + 2 + p], z[4 * p], z[4 * p + 1])
            pk("-", z[8 + 4 + p], z[4 * p + 2], z[4 * p + 3])
            pk("+", z[8 + 6 + p], z[4 * p + 2], z[4 * p + 3])
        for m in range(8):
            a(f"v_cvt_pk_bf16_f32 v{Y[m]+dw}, v{z[8+m]}, v{z[8+m]+1}")
    for m in range(8):
        a(f"buffer_store_dwordx2 {vr(Y[m],2)}, v{vL16}, {WS}, s55 offen{SC}")
        if m < 7:
            a(f"s_add_u32 s55, s55, {340*1024}")
    a(f"""
    v_mov_b32 v{vT[0]}, 0
    v_mov_b32 v{vT[1]}, 1
    s_waitcnt vmcnt(0)
    s_mov_b64 exec, 1
    buffer_store_dword v{vT[1]}, v{vT[0]}, {WS}, s56 offen{SC}
    s_mov_b64 exec, -1
    """)
    st(3)
    a.label(f"{name}_nof0b")
    sTT, sE2, sPAR, sT0, sLB = 62, 63, 64, 65, 66
    xa = [v.alloc() for _ in range(4)]
    LastC = v.alloc(4, 4); LastS = v.alloc(4, 4)
    a(f"""
    s_cmp_ge_u32 s54, 363
    s_cbranch_scc1 {name}_nog2a
    s_mul_i32 s{sTT}, s54, 5958
    s_lshr_b32 s{sTT}, s{sTT}, 16
    s_mul_i32 s{sT+1}, s{sTT}, 11
    s_sub_u32 s{sE2}, s54, s{sT+1}
    s_cmp_ge_u32 s{sTT}, 17
    s_cselect_b32 s{sPAR}, 1, 0
    s_cselect_b32 s{sT+3}, 17, 0
    s_sub_u32 s{sTT}, s{sTT}, s{sT+3}
    s_lshl_b32 s{sT0}, s{sTT}, 6
    s_add_u32 s{sT0}, s{sT0}, s{sPAR}
    s_and_b32 s{sLB}, s{sJ}, 1
    s_lshl_b32 s{sLB}, s{sLB}, 16
    s_add_u32 s{sLB}, s{sLB}, {G2_LDS}
    v_lshrrev_b32 v{vT[0]}, 3, v0
    v_lshlrev_b32 v{vT[0]}, 13, v{vT[0]}
    v_lshrrev_b32 v{vT[1]}, 4, v0
    v_and_b32 v{vT[2]}, 7, v0
    v_xor_b32 v{vT[3]}, v{vT[2]}, v{vT[1]}
    v_xor_b32 v{vT[2]}, 4, v{vT[3]}
    v_lshl_add_u32 v{xa[0]}, v{vT[3]}, 4, v{vT[0]}
    v_lshl_add_u32 v{xa[1]}, v{vT[2]}, 4, v{vT[0]}
    v_add_u32 v{xa[2]}, {2*(65536-1024)}, v{xa[0]}
    v_add_u32 v{xa[3]}, {3*(65536-1024)}, v{xa[1]}
    v_add_u32 v{xa[1]}, {65536-1024}, v{xa[1]}
    s_lshl_b32 s{sT}, s{sT0}, 12
    s_mov_b32 s{sT+1}, s{sLB}
    s_mov_b32 s{sT+2}, 8
    """)
    a.label(f"{name}_dma")
    a(f"s_mov_b32 m0, s{sT+1}")
    a(f"s_add_u32 s{sT+1}, s{sT+1}, 4096")
    for i in range(4):
        a(f"buffer_load_dwordx4 v{xa[i]}, s[28:31], s{sT} offen offset:{1024*i} lds")
    a(f"s_mov_b32 m0, s{sT+1}")
    a(f"s_add_u32 s{sT+1}, s{sT+1}, 4096")
    for i in range(4):
        a(f"buffer_load_dwordx4 v{xa[i]}, s[44:47], s{sT} offen offset:{1024*i} lds")
    depth = 16
    for o in opts:
        if o.startswith("hdepth"): depth = int(o[6:])
    a(f"""
    s_add_u32 s{sT}, s{sT}, 128
    s_waitcnt vmcnt({depth - 8})
    s_sub_u32 s{sT+2}, s{sT+2}, 1
    s_cmp_lg_u32 s{sT+2}, 0
    s_cbranch_scc1 {name}_dma
    v_and_b32 v{vT[0]}, 31, v0
    v_lshlrev_b32 v{vT[0]}, 13, v{vT[0]}
    v_lshrrev_b32 v{vT[1]}, 5, v0
    v_lshl_add_u32 v{vT[0]}, v{vT[1]}, 4, v{vT[0]}
    buffer_load_dwordx4 {vr(LastC,4)}, v{vT[0]}, s[28:31], s{sT} offen
    buffer_load_dwordx4 {vr(LastS,4)}, v{vT[0]}, s[44:47], s{sT} offen
    """)
    st(4)
    a.label(f"{name}_nog2a")
    mk = v.mark()
    acc = zb
    A = [v.alloc(4, 4) for _ in range(20)]
    a(f"""
    s_cmp_ge_u32 s53, 748
    s_cbranch_scc1 {name}_nog1b
    v_lshlrev_b32 v{vT[0]}, 2, v0
    s_lshl_b32 s{sT}, s{sST}, 8
    s_add_u32 s{sT}, s{sT}, {FLG0:#x}
    """)
    poll(a, f"{name}_p0", vT[0], vT[1], WS, sT, False)
    st(5)
    a(f"""
    s_lshl_b32 s{sT+5}, s{sC}, 1
    s_add_u32 s{sT+5}, s{sT+5}, s{sP}
    s_mul_i32 s{sT+5}, s{sT+5}, 17
    s_add_u32 s{sT+5}, s{sT+5}, s{sST}
    s_mul_i32 s{sT+5}, s{sT+5}, 20480
    s_add_u32 s{sT+5}, s{sT+5}, {XF:#x}
    """)
    for ks in range(20):
        if ks % 4 == 0 and ks:
            a(f"s_add_u32 s{sT+5}, s{sT+5}, 4096")
        a(f"buffer_load_dwordx4 {vr(A[ks],4)}, v{vL16}, {WS}, s{sT+5} offen offset:{(ks%4)*1024}{SC}")
    a(f"""
    v_lshrrev_b32 v{vT[2]}, 5, v{vT[4]}
    v_mul_u32_u24 v{vT[2]}, {34*1024}, v{vT[2]}
    v_and_b32 v{vT[0]}, 31, v{vT[4]}
    v_lshl_add_u32 v{vT[0]}, v{vT[5]}, 5, v{vT[0]}
    v_lshl_add_u32 v{vT[0]}, v{vT[0]}, 4, v{vT[2]}
    s_mul_i32 s{sT+5}, s{sC}, {12*34*1024}
    s_lshl_b32 s{sT+4}, s{sST}, 11
    s_add_u32 s{sT+5}, s{sT+5}, s{sT+4}
    s_add_u32 s{sT+5}, s{sT+5}, {AF:#x}
    s_and_b32 s{sT}, s{sC}, 1
    s_mul_i32 s{sT}, s{sT}, 6
    s_add_u32 s{sT}, s{sT}, s{sET}
    s_lshl_b32 s{sT}, s{sT}, 2
    s_and_b32 s{sT+1}, s{sC}, 2
    s_add_u32 s{sT}, s{sT}, s{sT+1}
    s_add_u32 s{sT}, s{sT}, s{sP}
    s_lshl_b32 s{sT}, s{sT}, 5
    s_add_u32 s{sT}, s{sT}, s{sST}
    s_lshl_b32 s{sT}, s{sT}, 2
    s_add_u32 s{sT}, s{sT}, {FLG1:#x}
    """)
    for ks in range(20):
        if ks % 4 == 0:
            a(f"s_waitcnt vmcnt({16-ks})")
        c = "0" if ks == 0 else vr(acc, 16)
        a(f"v_mfma_f32_32x32x16_bf16 {vr(acc,16)}, {vr(A[ks],4)}, {vr(Mf[ks],4)}, {c}")
    st(6)
    a("s_nop 7")
    a("s_nop 3")
    for i in range(8):
        a(f"v_cvt_pk_bf16_f32 v{acc+i}, v{acc+2*i}, v{acc+2*i+1}")
    a(f"""
    buffer_store_dwordx4 {vr(acc,4)}, v{vT[0]}, {WS}, s{sT+5} offen{SC}
    buffer_store_dwordx4 {vr(acc+4,4)}, v{vT[0]}, {WS}, s{sT+5} offen offset:1024{SC}
    v_mov_b32 v{vT[0]}, 0
    v_mov_b32 v{vT[1]}, 1
    s_waitcnt vmcnt(0)
    s_mov_b64 exec, 1
    buffer_store_dword v{vT[1]}, v{vT[0]}, {WS}, s{sT} offen{SC}
    s_mov_b64 exec, -1
    """)
    st(7)
    a.label(f"{name}_nog1b")
    hi1 = v.hi
    w = RegAlloc(m0, 256)
    def al(n, al_):
        while True:
            b = w.alloc(n, al_)
            if b + n <= LastC or b >= LastS + 4:
                return b
    U = al(16, 4); V = al(16, 4)
    ra = [al(1, 1) for _ in range(4)]
    FA = [[al(4, 4) for _ in range(2)] for _ in range(2)]
    NB = 44
    Bf = [al(4, 4) for _ in range(NB)]
    a(f"""
    s_cmp_ge_u32 s54, 363
    s_cbranch_scc1 {name}_end
    v_lshlrev_b32 v{vT[0]}, 3, v0
    s_mul_i32 s{sT}, s{sPAR}, 6
    s_lshr_b32 s{sT+1}, s{sE2}, 1
    s_add_u32 s{sT}, s{sT}, s{sT+1}
    s_lshl_b32 s{sT}, s{sT}, 9
    s_add_u32 s{sT}, s{sT}, {FLG1:#x}
    v_and_b32 v{vT[4]}, 31, v0
    v_lshrrev_b32 v{vT[5]}, 5, v0
    v_bfe_u32 v{vT[2]}, v0, 1, 3
    v_xor_b32 v{vT[2]}, v{vT[2]}, v{vT[5]}
    v_lshl_add_u32 v{vT[1]}, v{vT[4]}, 7, s{sLB}
    """)
    for k in range(4):
        a(f"v_xor_b32 v{vT[3]}, {2*k}, v{vT[2]}")
        a(f"v_lshl_add_u32 v{ra[k]}, v{vT[3]}, 4, v{vT[1]}")
    tmp2 = (vT[6] + 1) // 2 * 2
    assert tmp2 in vT and tmp2 + 1 in vT + [vL16] and tmp2 + 1 != vL16 or True
    poll(a, f"{name}_p1", vT[0], FA[0][0], WS, sT, True)
    if st_on:
        st(8)
        a("s_waitcnt lgkmcnt(0)")
    a(f"""
    s_mul_i32 s{sT+4}, s{sPAR}, 12
    s_add_u32 s{sT+4}, s{sT+4}, s{sE2}
    s_mul_i32 s{sT+4}, s{sT+4}, {34*1024}
    s_add_u32 s{sT+4}, s{sT+4}, {AF:#x}
    s_add_u32 s{sT+5}, s{sT+4}, {24*34*1024}
    """)
    nld = [0]
    def bload():
        n = nld[0]
        if n >= 66:
            return
        ks, m = divmod(n, 2)
        if m == 0 and ks % 4 == 0 and ks:
            a(f"s_add_u32 s{sT+4}, s{sT+4}, 4096")
            a(f"s_add_u32 s{sT+5}, s{sT+5}, 4096")
        a(f"buffer_load_dwordx4 {vr(Bf[n % NB],4)}, v{vL16}, {WS}, s{sT+4+m} offen offset:{(ks%4)*1024}{SC}")
        nld[0] += 1
    for _ in range(NB):
        bload()
    def aread(ks):
        if ks >= 32:
            return
        ch, k = divmod(ks, 4)
        for m in range(2):
            a(f"ds_read_b128 {vr(FA[ks&1][m],4)}, v{ra[k]} offset:{ch*8192 + m*4096}")
    aread(0)
    for ks in range(33):
        aread(ks + 1)
        out_after = nld[0] - (2 * ks + 2)
        lg = 2 if ks + 1 < 32 else 0
        a(f"s_waitcnt vmcnt({out_after}) lgkmcnt({lg})")
        ac = FA[ks & 1][0] if ks < 32 else LastC
        as_ = FA[ks & 1][1] if ks < 32 else LastS
        first = ks == 0
        a(f"v_mfma_f32_32x32x16_bf16 {vr(U,16)}, {vr(ac,4)}, {vr(Bf[(2*ks) % NB],4)}, {'0' if first else vr(U,16)}")
        a(f"v_mfma_f32_32x32x16_bf16 {vr(V,16)}, {vr(as_,4)}, {vr(Bf[(2*ks+1) % NB],4)}, {'0' if first else vr(V,16)}")
        bload(); bload()
    vA, vB, vC, vD = ra
    st(9)
    a(f"""
    s_lshl_b32 s{sT+4}, s{sE2}, 5
    v_add_u32 v{vT[0]}, s{sT+4}, v{vT[4]}
    v_mul_u32_u24 v{vT[1]}, 20480, v{vT[5]}
    v_sub_u32 v{vT[2]}, 20480, v{vT[1]}
    v_sub_u32 v{vT[3]}, 640, v{vT[0]}
    v_lshl_add_u32 v{vA}, v{vT[0]}, 1, v{vT[1]}
    v_lshl_add_u32 v{vB}, v{vT[3]}, 1, v{vT[1]}
    v_lshl_add_u32 v{vC}, v{vT[0]}, 1, v{vT[2]}
    v_lshl_add_u32 v{vD}, v{vT[3]}, 1, v{vT[2]}
    v_mov_b32 v{vT[1]}, {OOB:#x}
    v_cmp_lt_u32 vcc, 320, v{vT[0]}
    v_subrev_u32 v{vT[0]}, 1, v{vT[0]}
    s_mul_i32 s{sT+4}, s{sT0}, 2560
    v_cndmask_b32 v{vA}, v{vA}, v{vT[1]}, vcc
    v_cndmask_b32 v{vC}, v{vC}, v{vT[1]}, vcc
    v_cmp_le_u32 vcc, 319, v{vT[0]}
    s_sub_u32 s{sT+5}, {2040*2560 + 1280}, s{sT+4}
    s_add_u32 s{sT+4}, s{sT+4}, 1280
    v_cndmask_b32 v{vB}, v{vB}, v{vT[1]}, vcc
    v_cndmask_b32 v{vD}, v{vD}, v{vT[1]}, vcc
    s_cmp_eq_u32 s{sT0}, 1024
    s_cbranch_scc1 {name}_last
    """)
    O_ = "s[48:51]"
    for i in range(16):
        j, r = divmod(i, 4)
        row = (8 * j + r) * 2 * 2560
        a(f"v_sub_f32 v{vT[0]}, v{U+i}, v{V+i}")
        a(f"v_add_f32 v{vT[1]}, v{U+i}, v{V+i}")
        a(f"s_add_u32 s{sT}, s{sT+4}, {row}")
        a(f"s_sub_u32 s{sT+1}, s{sT+5}, {row}")
        a(f"v_cvt_pk_bf16_f32 v{U+i}, v{vT[0]}, v{vT[1]}")
        a(f"buffer_store_short v{U+i}, v{vA}, {O_}, s{sT} offen")
        a(f"buffer_store_short_d16_hi v{U+i}, v{vB}, {O_}, s{sT} offen")
        a(f"buffer_store_short_d16_hi v{U+i}, v{vC}, {O_}, s{sT+1} offen")
        a(f"buffer_store_short v{U+i}, v{vD}, {O_}, s{sT+1} offen")
    a(f"s_branch {name}_end")
    a.label(f"{name}_last")
    a(f"""
    v_sub_f32 v{vT[0]}, v{U}, v{V}
    v_add_f32 v{vT[1]}, v{U}, v{V}
    s_mov_b32 exec_hi, 0
    v_cvt_pk_bf16_f32 v{U}, v{vT[0]}, v{vT[1]}
    buffer_store_short v{U}, v{vA}, {O_}, s{sT+4} offen
    buffer_store_short_d16_hi v{U}, v{vB}, {O_}, s{sT+4} offen
    """)
    a.label(f"{name}_end")
    if "stamp" in opts:
        a(f"""
        s_mov_b64 exec, -1
        s_waitcnt vmcnt(0)
        s_memrealtime s[70:71]
        s_waitcnt lgkmcnt(0)
        v_mov_b32 v{vT[1]}, s70
        s_lshl_b32 s{sT}, s2, 2
        s_add_u32 s{sT}, s{sT}, s{sJ}
        s_lshl_b32 s{sT}, s{sT}, 2
        s_add_u32 s{sT}, s{sT}, {STAMP + 0x40000:#x}
        v_mov_b32 v{vT[0]}, 0
        s_mov_b64 exec, 1
        buffer_store_dword v{vT[1]}, v{vT[0]}, {WS}, s{sT} offen
        s_lshl_b32 s{sT}, s2, 2
        s_add_u32 s{sT}, s{sT}, s{sJ}
        s_lshl_b32 s{sT}, s{sT}, 6
        s_add_u32 s{sT}, s{sT}, {STAMP + 0x50000:#x}
        """)
        for i in range(10):
            a(f"v_mov_b32 v{vT[1]}, s{72+2*i}")
            a(f"buffer_store_dword v{vT[1]}, v{vT[0]}, {WS}, s{sT} offen offset:{4*i}")
    a("s_endpgm")
    return max(hi1, w.hi)


def gen_flag_init(a, vA, vB, vC, srdWS, sT):
    a(f"""
    v_lshlrev_b32 v{vA}, 2, v0
    v_cmp_le_u32 vcc, 40, v0
    s_mov_b32 s{sT}, {FLG0:#x}
    s_nop 0
    v_cndmask_b32 v{vB}, 0, 1, vcc
    """)
    for st in range(17):
        if st == 16:
            a(f"s_add_u32 s{sT}, s{sT}, 4096")
        a(f"buffer_store_dword v{vB}, v{vA}, {srdWS}, s{sT} offen offset:{(st % 16)*256}")
    a(f"""
    v_and_b32 v{vC}, 31, v0
    v_cmp_le_u32 vcc, 17, v{vC}
    s_mov_b32 s{sT}, {FLG1:#x}
    s_nop 0
    v_cndmask_b32 v{vB}, 0, 1, vcc
    v_cmp_le_u32 vcc, 32, v0
    s_nop 1
    v_cndmask_b32 v{vC}, v{vB}, 1, vcc
    """)
    for g in range(12):
        for ch in range(2):
            n = g * 2 + ch
            if n == 16:
                a(f"s_add_u32 s{sT}, s{sT}, 4096")
            a(f"buffer_store_dword v{vC if g % 6 == 5 else vB}, v{vA}, {srdWS}, s{sT} offen offset:{(n % 16)*256}")
```

```python
from asmlib import *
from layout import *
from k_help import poll

OOB = 0x80000000
G2_LDS = 28672
G1_LDS = 28672 + 131072
HELP_LDS = G1_LDS + 4096
SC = " sc0 sc1"


def gen_helper(a, name, sW, opts=()):
    v = RegAlloc(1, 256)
    vT = [v.alloc() for _ in range(8)]
    vL16 = v.alloc()
    sJ = 9; sT = 11
    WS = "s[4:7]"
    st_on = "stamp" in opts
    def st(i):
        if st_on:
            a(f"s_memrealtime s[{72+2*i}:{73+2*i}]")
    if st_on:
        for i in range(10):
            a(f"s_mov_b32 s{72+2*i}, 0")
    a(f"""
    s_load_dwordx2 s[48:49], s[0:1], 64
    s_sub_u32 s{sJ}, s{sW}, 4
    v_lshlrev_b32 v{vL16}, 4, v0
    s_mov_b32 s50, {2048*2560}
    s_mov_b32 s51, 0x00020000
    s_and_b32 s{sT}, s2, 7
    s_lshr_b32 s{sT+1}, s2, 3
    {f"s_branch {name}_exit0" if "noh" in opts else ""}
    s_cmp_ge_u32 s{sJ}, 2
    s_cbranch_scc1 {name}_g2
    s_lshl_b32 s{sT+2}, s{sJ}, 5
    s_add_u32 s{sT+1}, s{sT+1}, s{sT+2}
    s_cmp_ge_u32 s{sT+1}, 51
    s_cbranch_scc1 {name}_exit0
    {f"s_branch {name}_exit0" if "nog1" in opts else ""}
    s_mul_i32 s53, s{sT}, 51
    s_add_u32 s53, s53, s{sT+1}
    """)
    sC, sST, sEP = 57, 58, 59
    m0 = v.mark()
    acc = [v.alloc(16, 4) for _ in range(2)]
    NR = 26
    for o in opts:
        if o.startswith('NR'): NR = int(o[2:])
    A = [v.alloc(4, 4) for _ in range(NR)]
    M = [v.alloc(4, 4) for _ in range(NR)]
    a(f"""
    s_mul_i32 s{sC}, s53, 643
    s_lshr_b32 s{sC}, s{sC}, 16
    s_mul_i32 s{sT+1}, s{sC}, 102
    s_sub_u32 s{sT+1}, s53, s{sT+1}
    s_mul_i32 s{sST}, s{sT+1}, 10923
    s_lshr_b32 s{sST}, s{sST}, 16
    s_mul_i32 s{sT+3}, s{sST}, 6
    s_sub_u32 s{sEP}, s{sT+1}, s{sT+3}
    s_mul_i32 s{sT+4}, s{sC}, 34
    s_add_u32 s{sT+4}, s{sT+4}, s{sST}
    s_mul_i32 s{sT+4}, s{sT+4}, 20480
    s_add_u32 s{sT+4}, s{sT+4}, {XF:#x}
    s_mul_i32 s{sT+5}, s{sEP}, 40960
    s_lshr_b32 s{sT+6}, s{sC}, 1
    s_lshl_b32 s{sT+6}, s{sT+6}, 10
    s_add_u32 s{sT+5}, s{sT+5}, s{sT+6}
    s_add_u32 s{sT+5}, s{sT+5}, {DF:#x}
    v_and_b32 v{vT[0]}, 15, v0
    v_lshlrev_b32 v{vT[0]}, 5, v{vT[0]}
    v_bfe_u32 v{vT[1]}, v0, 4, 1
    v_lshl_add_u32 v{vT[0]}, v{vT[1]}, 10, v{vT[0]}
    v_lshrrev_b32 v{vT[1]}, 5, v0
    v_lshl_add_u32 v{vT[0]}, v{vT[1]}, 9, v{vT[0]}
    s_lshl_b32 s{sT+6}, s{sJ}, 11
    s_add_u32 s{sT+6}, s{sT+6}, {G1_LDS}
    v_add_u32 v{vT[0]}, s{sT+6}, v{vT[0]}
    v_add_u32 v{vT[1]}, s{sT+6}, v{vL16}
    """)
    st(0)
    a("s_barrier")
    st(1)
    if "g1prio" in opts:
        a("s_setprio 2")
    nld = [0]
    def g1load():
        n = nld[0]
        if n >= 40:
            return
        p, ks = divmod(n, 20)
        if n == 20:
            a(f"s_add_u32 s{sT+4}, s{sT+4}, {17*20480 - 16384}")
            a(f"s_add_u32 s{sT+5}, s{sT+5}, {6*40960 - 36864}")
        else:
            if ks % 4 == 0 and ks:
                a(f"s_add_u32 s{sT+4}, s{sT+4}, 4096")
            if ks % 2 == 0 and ks:
                a(f"s_add_u32 s{sT+5}, s{sT+5}, 4096")
        a(f"buffer_load_dwordx4 {vr(A[n % NR],4)}, v{vL16}, {WS}, s{sT+4} offen offset:{(ks%4)*1024}")
        a(f"buffer_load_dwordx4 {vr(M[n % NR],4)}, v{vL16}, {WS}, s{sT+5} offen offset:{(ks%2)*2048}")
        nld[0] += 1
    for _ in range(NR):
        g1load()
    for n in range(40):
        p, ks = divmod(n, 20)
        a(f"s_waitcnt vmcnt({2*(nld[0]-n-1)})")
        c = "0" if ks == 0 else vr(acc[p], 16)
        a(f"v_mfma_f32_32x32x16_bf16 {vr(acc[p],16)}, {vr(A[n % NR],4)}, {vr(M[n % NR],4)}, {c}")
        g1load()
    st(6)
    a(f"""
    s_mul_i32 s{sT+4}, s{sC}, 6
    s_add_u32 s{sT+4}, s{sT+4}, s{sEP}
    s_mul_i32 s{sT+4}, s{sT+4}, 34
    s_add_u32 s{sT+4}, s{sT+4}, s{sST}
    s_lshl_b32 s{sT+4}, s{sT+4}, 11
    s_add_u32 s{sT+4}, s{sT+4}, {AF:#x}
    s_add_u32 s{sT+5}, s{sT+4}, {34*1024}
    s_and_b32 s{sT}, s{sC}, 1
    s_mul_i32 s{sT}, s{sT}, 6
    s_add_u32 s{sT}, s{sT}, s{sEP}
    s_lshl_b32 s{sT}, s{sT}, 6
    s_lshr_b32 s{sT+1}, s{sC}, 1
    s_mul_i32 s{sT+1}, s{sT+1}, 17
    s_add_u32 s{sT}, s{sT}, s{sT+1}
    s_add_u32 s{sT}, s{sT}, s{sST}
    s_lshl_b32 s{sT}, s{sT}, 2
    s_add_u32 s{sT}, s{sT}, {FLG1:#x}
    """)
    for p in range(2):
        for i in range(8):
            a(f"v_cvt_pk_bf16_f32 v{acc[p]+i}, v{acc[p]+2*i}, v{acc[p]+2*i+1}")
    for k2 in range(2):
        for p in range(2):
            a(f"ds_write_b128 v{vT[0]}, {vr(acc[p]+4*k2,4)} offset:{16*p}")
        a("s_waitcnt lgkmcnt(0)")
        for b in range(2):
            a(f"ds_read_b128 {vr(A[2*k2+b],4)}, v{vT[1]} offset:{1024*b}")
        a("s_waitcnt lgkmcnt(0)")
        for b in range(2):
            a(f"buffer_store_dwordx4 {vr(A[2*k2+b],4)}, v{vL16}, {WS}, s{sT+4+b} offen offset:{1024*k2}{SC}")
    a(f"""
    v_mov_b32 v{vT[0]}, 0
    v_mov_b32 v{vT[1]}, 1
    s_waitcnt vmcnt(0)
    s_mov_b64 exec, 1
    buffer_store_dword v{vT[1]}, v{vT[0]}, {WS}, s{sT} offen{SC}
    """)
    st(7)
    a(f"s_branch {name}_end")
    a.label(f"{name}_exit0")
    a("s_endpgm")
    hi1 = v.hi
    a.label(f"{name}_g2")
    v.release(m0)
    sTT, sE2, sPAR, sT0, sLB = 62, 63, 64, 65, 66
    U = v.alloc(16, 4); V = v.alloc(16, 4)
    ra = [v.alloc() for _ in range(4)]
    LastC = v.alloc(4, 4); LastS = v.alloc(4, 4)
    FA = [[v.alloc(4, 4) for _ in range(2)] for _ in range(2)]
    NB = 44
    for o in opts:
        if o.startswith('NB'): NB = int(o[2:])
    Bf = [v.alloc(4, 4) for _ in range(NB)]
    a(f"""
    s_sub_u32 s{sT+2}, 63, s{sT+1}
    s_cmp_eq_u32 s{sJ}, 3
    s_cselect_b32 s{sT+1}, s{sT+1}, s{sT+2}
    s_cmp_ge_u32 s{sT+1}, 46
    s_cbranch_scc1 {name}_exit0
    {f"s_branch {name}_exit0" if "nog2" in opts else ""}
    s_mul_i32 s54, s{sT}, 46
    s_add_u32 s54, s54, s{sT+1}
    s_cmp_ge_u32 s54, 363
    s_cbranch_scc1 {name}_exit0
    s_mul_i32 s{sTT}, s54, 5958
    s_lshr_b32 s{sTT}, s{sTT}, 16
    s_mul_i32 s{sT+1}, s{sTT}, 11
    s_sub_u32 s{sE2}, s54, s{sT+1}
    s_mul_i32 s{sT}, s{sTT}, {66*1024}
    s_add_u32 s{sT}, s{sT}, {CF:#x}
    s_cmp_ge_u32 s{sTT}, 17
    s_cselect_b32 s{sPAR}, 1, 0
    s_cselect_b32 s{sT+3}, 17, 0
    s_sub_u32 s{sTT}, s{sTT}, s{sT+3}
    s_lshl_b32 s{sT0}, s{sTT}, 6
    s_add_u32 s{sT0}, s{sT0}, s{sPAR}
    s_and_b32 s{sLB}, s{sJ}, 1
    s_lshl_b32 s{sLB}, s{sLB}, 16
    s_add_u32 s{sLB}, s{sLB}, {G2_LDS}
    s_mov_b32 s{sT+1}, s{sLB}
    s_mov_b32 s{sT+2}, 16
    v_add_u32 v{ra[0]}, s{sLB}, v{vL16}
    v_and_b32 v{vT[4]}, 31, v0
    v_lshrrev_b32 v{vT[5]}, 5, v0
    """)
    st(0)
    a("s_barrier")
    st(1)
    depth = 16
    for o in opts:
        if o.startswith("hdepth"): depth = int(o[6:])
    a.label(f"{name}_dma")
    a(f"s_mov_b32 m0, s{sT+1}")
    a(f"s_add_u32 s{sT+1}, s{sT+1}, 4096")
    for i in range(4):
        a(f"buffer_load_dwordx4 v{vL16}, {WS}, s{sT} offen offset:{1024*i} lds")
    a(f"""
    s_add_u32 s{sT}, s{sT}, 4096
    s_waitcnt vmcnt({depth - 4})
    s_sub_u32 s{sT+2}, s{sT+2}, 1
    s_cmp_lg_u32 s{sT+2}, 0
    s_cbranch_scc1 {name}_dma
    buffer_load_dwordx4 {vr(LastC,4)}, v{vL16}, {WS}, s{sT} offen
    buffer_load_dwordx4 {vr(LastS,4)}, v{vL16}, {WS}, s{sT} offen offset:1024
    v_lshlrev_b32 v{vT[0]}, 2, v0
    s_mul_i32 s{sT}, s{sPAR}, 6
    s_lshr_b32 s{sT+1}, s{sE2}, 1
    s_add_u32 s{sT}, s{sT}, s{sT+1}
    s_lshl_b32 s{sT}, s{sT}, 8
    s_add_u32 s{sT}, s{sT}, {FLG1:#x}
    """)
    st(4)
    slp = 8
    for o in opts:
        if o.startswith("sleep"): slp = int(o[5:])
    if "nopoll" not in opts:
        poll(a, f"{name}_p1", vT[0], vT[1], WS, sT, False, sleep=slp)
    else:
        a("s_waitcnt vmcnt(0)")
    if st_on:
        st(8)
        a("s_waitcnt lgkmcnt(0)")
    a(f"""
    s_mul_i32 s{sT+4}, s{sPAR}, 12
    s_add_u32 s{sT+4}, s{sT+4}, s{sE2}
    s_mul_i32 s{sT+4}, s{sT+4}, {34*1024}
    s_add_u32 s{sT+4}, s{sT+4}, {AF:#x}
    s_add_u32 s{sT+5}, s{sT+4}, {24*34*1024}
    """)
    if "g2prio" in opts:
        a("s_setprio 2")
    nb = [0]
    def bload():
        n = nb[0]
        if n >= 66:
            return
        ks, m = divmod(n, 2)
        if m == 0 and ks % 4 == 0 and ks:
            a(f"s_add_u32 s{sT+4}, s{sT+4}, 4096")
            a(f"s_add_u32 s{sT+5}, s{sT+5}, 4096")
        a(f"buffer_load_dwordx4 {vr(Bf[n % NB],4)}, v{vL16}, {WS}, s{sT+4+m} offen offset:{(ks%4)*1024}{SC}")
        nb[0] += 1
    for _ in range(NB):
        bload()
    def aread(ks):
        if ks >= 32:
            return
        for m in range(2):
            a(f"ds_read_b128 {vr(FA[ks&1][m],4)}, v{ra[0]} offset:{ks*2048 + m*1024}")
    aread(0)
    for ks in range(33):
        aread(ks + 1)
        out_after = nb[0] - (2 * ks + 2)
        lg = 2 if ks + 1 < 32 else 0
        a(f"s_waitcnt vmcnt({out_after}) lgkmcnt({lg})")
        ac = FA[ks & 1][0] if ks < 32 else LastC
        as_ = FA[ks & 1][1] if ks < 32 else LastS
        first = ks == 0
        a(f"v_mfma_f32_32x32x16_bf16 {vr(U,16)}, {vr(ac,4)}, {vr(Bf[(2*ks) % NB],4)}, {'0' if first else vr(U,16)}")
        a(f"v_mfma_f32_32x32x16_bf16 {vr(V,16)}, {vr(as_,4)}, {vr(Bf[(2*ks+1) % NB],4)}, {'0' if first else vr(V,16)}")
        bload(); bload()
    vA, vB, vC, vD = ra
    if "epiprio" in opts:
        a("s_setprio 2")
    if "nog2st" in opts:
        a(f"s_branch {name}_end")
    st(9)
    a(f"""
    s_lshl_b32 s{sT+4}, s{sE2}, 5
    v_add_u32 v{vT[0]}, s{sT+4}, v{vT[4]}
    v_mul_u32_u24 v{vT[1]}, 20480, v{vT[5]}
    v_sub_u32 v{vT[2]}, 20480, v{vT[1]}
    v_sub_u32 v{vT[3]}, 640, v{vT[0]}
    v_lshl_add_u32 v{vA}, v{vT[0]}, 1, v{vT[1]}
    v_lshl_add_u32 v{vB}, v{vT[3]}, 1, v{vT[1]}
    v_lshl_add_u32 v{vC}, v{vT[0]}, 1, v{vT[2]}
    v_lshl_add_u32 v{vD}, v{vT[3]}, 1, v{vT[2]}
    v_mov_b32 v{vT[1]}, {OOB:#x}
    v_cmp_lt_u32 vcc, 320, v{vT[0]}
    v_subrev_u32 v{vT[0]}, 1, v{vT[0]}
    s_mul_i32 s{sT+4}, s{sT0}, 2560
    v_cndmask_b32 v{vA}, v{vA}, v{vT[1]}, vcc
    v_cndmask_b32 v{vC}, v{vC}, v{vT[1]}, vcc
    v_cmp_le_u32 vcc, 319, v{vT[0]}
    s_sub_u32 s{sT+5}, {2040*2560 + 1280}, s{sT+4}
    s_add_u32 s{sT+4}, s{sT+4}, 1280
    v_cndmask_b32 v{vB}, v{vB}, v{vT[1]}, vcc
    v_cndmask_b32 v{vD}, v{vD}, v{vT[1]}, vcc
    s_waitcnt lgkmcnt(0)
    s_cmp_eq_u32 s{sT0}, 1024
    s_cbranch_scc1 {name}_last
    """)
    O_ = "s[48:51]"
    for i in range(16):
        j, r = divmod(i, 4)
        row = (8 * j + r) * 2 * 2560
        a(f"v_sub_f32 v{vT[0]}, v{U+i}, v{V+i}")
        a(f"v_add_f32 v{vT[1]}, v{U+i}, v{V+i}")
        a(f"s_add_u32 s{sT}, s{sT+4}, {row}")
        a(f"s_sub_u32 s{sT+1}, s{sT+5}, {row}")
        a(f"v_cvt_pk_bf16_f32 v{U+i}, v{vT[0]}, v{vT[1]}")
        a(f"buffer_store_short v{U+i}, v{vA}, {O_}, s{sT} offen")
        a(f"buffer_store_short_d16_hi v{U+i}, v{vB}, {O_}, s{sT} offen")
        a(f"buffer_store_short_d16_hi v{U+i}, v{vC}, {O_}, s{sT+1} offen")
        a(f"buffer_store_short v{U+i}, v{vD}, {O_}, s{sT+1} offen")
    a(f"s_branch {name}_end")
    a.label(f"{name}_last")
    a(f"""
    v_sub_f32 v{vT[0]}, v{U}, v{V}
    v_add_f32 v{vT[1]}, v{U}, v{V}
    s_mov_b32 exec_hi, 0
    v_cvt_pk_bf16_f32 v{U}, v{vT[0]}, v{vT[1]}
    buffer_store_short v{U}, v{vA}, {O_}, s{sT+4} offen
    buffer_store_short_d16_hi v{U}, v{vB}, {O_}, s{sT+4} offen
    """)
    a.label(f"{name}_end")
    if st_on:
        a(f"""
        s_mov_b64 exec, -1
        s_waitcnt vmcnt(0)
        s_memrealtime s[70:71]
        s_waitcnt lgkmcnt(0)
        v_mov_b32 v{vT[1]}, s70
        s_lshl_b32 s{sT}, s2, 2
        s_add_u32 s{sT}, s{sT}, s{sJ}
        s_lshl_b32 s{sT}, s{sT}, 2
        s_add_u32 s{sT}, s{sT}, {STAMP + 0x40000:#x}
        v_mov_b32 v{vT[0]}, 0
        s_mov_b64 exec, 1
        buffer_store_dword v{vT[1]}, v{vT[0]}, {WS}, s{sT} offen
        s_lshl_b32 s{sT}, s2, 2
        s_add_u32 s{sT}, s{sT}, s{sJ}
        s_lshl_b32 s{sT}, s{sT}, 6
        s_add_u32 s{sT}, s{sT}, {STAMP + 0x50000:#x}
        """)
        for i in range(10):
            a(f"v_mov_b32 v{vT[1]}, s{72+2*i}")
            a(f"buffer_store_dword v{vT[1]}, v{vT[0]}, {WS}, s{sT} offen offset:{4*i}")
    a("s_endpgm")
    return max(hi1, v.hi)
```

```python
from asmlib import *
from layout import *
from k_attn import kernel_header
import struct

NS = 5
QKV2_LDS = NS * 32768
T_OFF = 0
T_PITCH = 272
C_SCALE = (20 ** -0.5) * 1.4426950408889634
OOB = 0x80000000
SC = " sc0 sc1"

def f2u(x):
    return struct.unpack("<I", struct.pack("<f", x))[0]


def table_item(a, name, sI, sT, vT, R, WS):
    a(f"""
    s_cmp_ge_u32 s{sI}, 1089
    s_cbranch_scc1 {name}_df
    s_mul_i32 s{sT}, s{sI}, 1986
    s_lshr_b32 s{sT}, s{sT}, 16
    s_mul_i32 s{sT+1}, s{sT}, 33
    s_sub_u32 s{sT+1}, s{sI}, s{sT+1}
    s_cmp_ge_u32 s{sT}, 17
    s_cselect_b32 s{sT+2}, {17*64-1}, 0
    s_lshl_b32 s{sT}, s{sT}, 6
    s_sub_u32 s{sT}, s{sT}, s{sT+2}
    s_mov_b32 s{sT+2}, {f2u(1.0/2048):#x}
    s_lshl_b32 s{sT+3}, s{sI}, 11
    s_add_u32 s{sT+3}, s{sT+3}, {CF:#x}
    s_branch {name}_go
    """)
    a.label(f"{name}_df")
    a(f"""
    s_sub_u32 s{sT+3}, s{sI}, 1089
    s_mul_i32 s{sT}, s{sT+3}, 3277
    s_lshr_b32 s{sT}, s{sT}, 16
    s_mul_i32 s{sT+1}, s{sT}, 20
    s_sub_u32 s{sT+1}, s{sT+3}, s{sT+1}
    s_cmp_ge_u32 s{sT}, 6
    s_cselect_b32 s{sT+2}, {6*64-1}, 0
    s_lshl_b32 s{sT}, s{sT}, 6
    s_sub_u32 s{sT}, s{sT}, s{sT+2}
    s_mov_b32 s{sT+2}, {f2u(1.0/640):#x}
    s_lshl_b32 s{sT+3}, s{sT+3}, 11
    s_add_u32 s{sT+3}, s{sT+3}, {DF:#x}
    """)
    a.label(f"{name}_go")
    a(f"""
    v_and_b32 v{vT[0]}, 31, v0
    v_lshl_add_u32 v{vT[0]}, v{vT[0]}, 1, s{sT}
    v_lshrrev_b32 v{vT[1]}, 5, v0
    v_lshlrev_b32 v{vT[1]}, 3, v{vT[1]}
    s_lshl_b32 s{sT+1}, s{sT+1}, 4
    v_add_u32 v{vT[1]}, s{sT+1}, v{vT[1]}
    v_mul_u32_u24 v{vT[1]}, v{vT[0]}, v{vT[1]}
    v_cvt_f32_u32 v{vT[0]}, v{vT[0]}
    v_cvt_f32_u32 v{vT[1]}, v{vT[1]}
    v_lshlrev_b32 v{vT[2]}, 4, v0
    """)
    for i in range(8):
        if i:
            a(f"v_add_f32 v{vT[1]}, v{vT[1]}, v{vT[0]}")
        a(f"v_mul_f32 v{R+i}, s{sT+2}, v{vT[1]}")
        a(f"v_fract_f32 v{R+i}, v{R+i}")
    for i in range(8):
        a(f"v_cos_f32 v{R+8+i}, v{R+i}")
        a(f"v_sin_f32 v{R+i}, -v{R+i}")
    for i in range(4):
        a(f"v_cvt_pk_bf16_f32 v{R+16+i}, v{R+8+2*i}, v{R+8+2*i+1}")
        a(f"v_cvt_pk_bf16_f32 v{R+20+i}, v{R+2*i}, v{R+2*i+1}")
    a(f"buffer_store_dwordx4 {vr(R+16,4)}, v{vT[2]}, {WS}, s{sT+3} offen{SC}")
    a(f"buffer_store_dwordx4 {vr(R+20,4)}, v{vT[2]}, {WS}, s{sT+3} offen offset:1024{SC}")


def gen_qkv2(a, name="qkv_kernel", stamp=False, opts=()):
    kernel_header(a, name)
    v = RegAlloc(1, 256)
    vT = [v.alloc() for _ in range(8)]
    xv = [v.alloc() for _ in range(4)]
    wv = [v.alloc() for _ in range(4)]
    xr = [[v.alloc() for _ in range(4)] for _ in range(3)]
    wr = [[v.alloc() for _ in range(2)] for _ in range(3)]
    acc = [[v.alloc(16, 4) for _ in range(2)] for _ in range(2)]
    fx = [[v.alloc(4, 4) for _ in range(2)] for _ in range(2)]
    fw = [[v.alloc(4, 4) for _ in range(2)] for _ in range(2)]
    sW = 3; sX = 20; sWo = 21; sM = 22; sT = 23; sHP = 30; sRB = 31; sJ = 36; sRot = 37; sF0 = 38; sXF = 39
    WS = "s[12:15]"
    NC = 10
    lb = 2
    for o in opts:
        if o.startswith("mapB"): lb = int(o[4:])
    la = 5 - lb
    def st(i):
        if stamp:
            a(f"s_memrealtime s[{60+2*i}:{61+2*i}]")
    a(f"""
    s_cmp_ge_u32 s2, 256
    s_cbranch_scc1 {name}_end
    """)
    st(0)
    a(f"""
    s_load_dwordx4 s[16:19], s[0:1], 0
    s_load_dwordx2 s[12:13], s[0:1], 80
    s_load_dwordx2 s[44:45], s[0:1], 24
    v_lshrrev_b32 v{vT[0]}, 6, v0
    v_and_b32 v0, 63, v0
    v_readfirstlane_b32 s{sW}, v{vT[0]}
    s_and_b32 s{sT}, s2, 7
    s_lshr_b32 s{sT+1}, s2, 3
    s_and_b32 s{sT+2}, s{sT}, {(16 >> lb) - 1}
    s_lshl_b32 s{sHP}, s{sT+2}, {lb}
    s_and_b32 s{sT+2}, s{sT+1}, {(1 << lb) - 1}
    s_add_u32 s{sHP}, s{sHP}, s{sT+2}
    s_lshr_b32 s{sT+2}, s{sT}, {4 - lb}
    s_lshl_b32 s{sRB}, s{sT+2}, {la}
    s_lshr_b32 s{sT+2}, s{sT+1}, {lb}
    s_add_u32 s{sRB}, s{sRB}, s{sT+2}
    s_mov_b32 s14, {WS_BYTES:#x}
    s_mov_b32 s15, 0x00020000
    s_cmp_lt_u32 s{sW}, 4
    s_cbranch_scc1 {name}_comp
    """)
    a(f"""
    s_sub_u32 s{sJ}, s{sW}, 4
    s_mov_b32 s6, {2048*1280}
    s_mov_b32 s7, 0x00020000
    s_mov_b32 s10, {640*3840}
    s_mov_b32 s11, 0x00020000
    s_lshl_b32 s{sX}, s{sRB}, 2
    s_add_u32 s{sX}, s{sX}, s{sJ}
    s_mul_i32 s{sX}, s{sX}, {32*1280}
    s_mul_i32 s{sWo}, s{sJ}, {16*3840}
    s_mul_i32 s{sT}, s{sHP}, 80
    s_add_u32 s{sWo}, s{sWo}, s{sT}
    s_lshl_b32 s{sM}, s{sJ}, 12
    v_lshrrev_b32 v{vT[0]}, 3, v0
    v_mul_u32_u24 v{vT[0]}, 1280, v{vT[0]}
    v_lshrrev_b32 v{vT[1]}, 4, v0
    v_and_b32 v{vT[2]}, 7, v0
    v_xor_b32 v{vT[3]}, v{vT[2]}, v{vT[1]}
    v_xor_b32 v{vT[4]}, 4, v{vT[3]}
    v_lshl_add_u32 v{xv[0]}, v{vT[3]}, 4, v{vT[0]}
    v_lshl_add_u32 v{xv[1]}, v{vT[4]}, 4, v{vT[0]}
    v_add_u32 v{xv[2]}, {2*(10240-1024)}, v{xv[0]}
    v_add_u32 v{xv[3]}, {3*(10240-1024)}, v{xv[1]}
    v_add_u32 v{xv[1]}, {10240-1024}, v{xv[1]}
    v_and_b32 v{vT[2]}, 15, v0
    v_lshlrev_b32 v{vT[3]}, 2, v{vT[1]}
    v_xor_b32 v{vT[2]}, v{vT[2]}, v{vT[3]}
    v_min_u32 v{vT[2]}, 14, v{vT[2]}
    v_mul_u32_u24 v{vT[3]}, 52, v{vT[2]}
    v_lshrrev_b32 v{vT[3]}, 8, v{vT[3]}
    v_mul_u32_u24 v{vT[3]}, 1200, v{vT[3]}
    v_lshl_add_u32 v{vT[3]}, v{vT[2]}, 4, v{vT[3]}
    v_mul_u32_u24 v{vT[1]}, 3840, v{vT[1]}
    v_add_u32 v{wv[0]}, v{vT[1]}, v{vT[3]}
    v_add_u32 v{wv[1]}, {14336}, v{wv[0]}
    v_add_u32 v{wv[2]}, {2*14336}, v{wv[0]}
    v_add_u32 v{wv[3]}, {3*14336}, v{wv[0]}
    s_lshr_b32 s{sRot}, s2, 3
    s_mul_i32 s{sRot}, s{sRot}, 3
    s_mul_i32 s{sT}, s{sRot}, 6554
    s_lshr_b32 s{sT}, s{sT}, 16
    s_mul_i32 s{sT}, s{sT}, 10
    s_sub_u32 s{sRot}, s{sRot}, s{sT}
    s_lshl_b32 s{sT}, s{sRot}, 7
    s_add_u32 s{sX}, s{sX}, s{sT}
    s_mul_i32 s{sT}, s{sRot}, {64*3840}
    s_add_u32 s{sWo}, s{sWo}, s{sT}
    s_lshl_b32 s{sF0}, s{sJ}, 8
    s_add_u32 s{sF0}, s{sF0}, s2
    s_waitcnt lgkmcnt(0)
    s_mov_b32 s4, s16
    s_mov_b32 s5, s17
    s_mov_b32 s8, s18
    s_mov_b32 s9, s19
    """)

    def dma(c):
        stg = (c % NS) * 32768
        a(f"s_add_u32 m0, s{sM}, {stg}")
        a(f"s_add_u32 s{sRot}, s{sRot}, 1")
        for i in range(4):
            a(f"buffer_load_dwordx4 v{xv[i]}, s[4:7], s{sX} offen offset:{1024*i} lds")
        a(f"s_add_u32 m0, s{sM}, {stg + 16384}")
        a(f"s_cmp_eq_u32 s{sRot}, 10")
        for i in range(4):
            a(f"buffer_load_dwordx4 v{wv[i]}, s[8:11], s{sWo} offen offset:{1024*i} lds")
        a(f"""
        s_cselect_b32 s{sT}, -9, 1
        s_mul_i32 s{sT+1}, s{sT}, {64*3840}
        s_lshl_b32 s{sT}, s{sT}, 7
        s_add_u32 s{sX}, s{sX}, s{sT}
        s_add_u32 s{sWo}, s{sWo}, s{sT+1}
        """)

    A0 = acc[0][0]
    X = [[A0 + 8 * i + 4 * hf for hf in range(2)] for i in range(4)]
    zb = A0 + 32
    z = [zb + 2 * i for i in range(16)]
    Y = [fx[0][0] + 4 * m for m in range(8)]
    off = [xr[0][i] for i in range(4)]

    def f0_loads():
        a(f"""
        s_cmp_ge_u32 s{sF0}, 340
        s_cbranch_scc1 {name}_nof0a
        s_mov_b32 s46, {2048*1280}
        s_mov_b32 s47, 0x00020000
        s_mul_i32 s{sT}, s{sF0}, 3277
        s_lshr_b32 s{sT}, s{sT}, 16
        s_mul_i32 s{sT+1}, s{sT}, 20
        s_sub_u32 s{sT+1}, s{sF0}, s{sT+1}
        v_and_b32 v{vT[0]}, 19, v0
        v_lshrrev_b32 v{vT[1]}, 1, v0
        v_and_b32 v{vT[1]}, 4, v{vT[1]}
        v_lshlrev_b32 v{vT[2]}, 1, v0
        v_and_b32 v{vT[2]}, 8, v{vT[2]}
        v_or3_b32 v{vT[0]}, v{vT[0]}, v{vT[1]}, v{vT[2]}
        s_lshl_b32 s{sT+2}, s{sT}, 5
        v_add_u32 v{vT[0]}, s{sT+2}, v{vT[0]}
        v_lshrrev_b32 v{vT[1]}, 5, v0
        v_lshlrev_b32 v{vT[1]}, 4, v{vT[1]}
        v_mul_u32_u24 v{vT[2]}, 1280, v{vT[0]}
        v_add_u32 v{off[0]}, v{vT[2]}, v{vT[1]}
        v_sub_u32 v{off[1]}, v{vT[1]}, v{vT[2]}
        v_add_u32 v{off[2]}, {1024*1280}, v{off[1]}
        v_add_u32 v{off[1]}, {2048*1280}, v{off[1]}
        v_add_u32 v{off[3]}, {1024*1280}, v{off[0]}
        v_mov_b32 v{vT[3]}, {OOB:#x}
        v_cmp_lt_u32 vcc, 512, v{vT[0]}
        s_lshl_b32 s{sT+2}, s{sT+1}, 5
        s_lshl_b32 s{sXF}, s{sF0}, 10
        v_cndmask_b32 v{off[0]}, v{off[0]}, v{vT[3]}, vcc
        v_cndmask_b32 v{off[1]}, v{off[1]}, v{vT[3]}, vcc
        v_cmp_lt_u32 vcc, 511, v{vT[0]}
        s_add_u32 s{sXF}, s{sXF}, {XF:#x}
        s_nop 0
        v_cndmask_b32 v{off[2]}, v{off[2]}, v{vT[3]}, vcc
        v_cndmask_b32 v{off[3]}, v{off[3]}, v{vT[3]}, vcc
        v_cmp_eq_u32 vcc, 0, v{vT[0]}
        s_nop 1
        v_cndmask_b32 v{off[3]}, v{off[3]}, v{vT[3]}, vcc
        """)
        for i in range(4):
            for hf in range(2):
                a(f"buffer_load_dwordx4 {vr(X[i][hf],4)}, v{off[i]}, s[44:47], s{sT+2} offen offset:{640*hf}")
        a.label(f"{name}_nof0a")

    after = {-1: [0, 1], 0: [2], 1: [3], 2: [4, 5], 3: [6], 4: [7], 5: [8], 6: [9]}
    f0_after = 2
    for o in opts:
        if o.startswith("f0at"): f0_after = int(o[4:])
    issued = []
    for c in after[-1]:
        dma(c); issued.append(c)
    f0_issued_upto = None
    for c in range(NC):
        later = len([x for x in issued if x > c])
        n = 8 * later
        f0_younger = ("nof0" not in opts) and f0_issued_upto is not None and c <= f0_issued_upto and later > 0
        if f0_younger:
            a(f"s_cmp_ge_u32 s{sF0}, 340")
            a(f"s_cbranch_scc1 {name}_w{c}a")
            a(f"s_waitcnt vmcnt({n + 8})")
            a(f"s_branch {name}_w{c}b")
            a.label(f"{name}_w{c}a")
            a(f"s_waitcnt vmcnt({n})")
            a.label(f"{name}_w{c}b")
        else:
            a(f"s_waitcnt vmcnt({n})")
        if c in (0, 3, 9): st(1 + (0, 3, 9).index(c))
        a("s_barrier")
        for x in after.get(c, []):
            dma(x); issued.append(x)
        if c == f0_after and "nof0" not in opts:
            f0_loads()
            f0_issued_upto = max(issued)
    if "nof0" not in opts:
        a(f"""
        s_cmp_ge_u32 s{sF0}, 340
        s_cbranch_scc1 {name}_nof0b
        s_waitcnt vmcnt(0)
        v_lshlrev_b32 v{vT[0]}, 4, v0
        """)
        def pk(op, d, x, y):
            neg = " neg_lo:[0,1] neg_hi:[0,1]" if op == "-" else ""
            a(f"v_pk_add_f32 {vr(d,2)}, {vr(x,2)}, {vr(y,2)}{neg}")
        for dw in range(4):
            for i in range(4):
                for hf in range(2):
                    d = z[2 * i + hf]
                    a(f"v_lshlrev_b32 v{d}, 16, v{X[i][hf]+dw}")
                    a(f"v_and_b32 v{d+1}, 0xffff0000, v{X[i][hf]+dw}")
            for i in range(4):
                pk("+", z[8 + 2 * i], z[2 * i], z[2 * i + 1])
                pk("-", z[8 + 2 * i + 1], z[2 * i], z[2 * i + 1])
            for p in range(2):
                pk("+", z[4 * p + 0], z[8 + p], z[10 + p])
                pk("+", z[4 * p + 1], z[12 + p], z[14 + p])
                pk("-", z[4 * p + 2], z[8 + p], z[10 + p])
                pk("-", z[4 * p + 3], z[12 + p], z[14 + p])
            for p in range(2):
                pk("+", z[8 + 0 + p], z[4 * p], z[4 * p + 1])
                pk("-", z[8 + 2 + p], z[4 * p], z[4 * p + 1])
                pk("-", z[8 + 4 + p], z[4 * p + 2], z[4 * p + 3])
                pk("+", z[8 + 6 + p], z[4 * p + 2], z[4 * p + 3])
            for m in range(8):
                a(f"v_cvt_pk_bf16_f32 v{Y[m]+dw}, v{z[8+m]}, v{z[8+m]+1}")
        for m in range(8):
            a(f"buffer_store_dwordx4 {vr(Y[m],4)}, v{vT[0]}, {WS}, s{sXF} offen")
            if m < 7:
                a(f"s_add_u32 s{sXF}, s{sXF}, {340*1024}")
        a.label(f"{name}_nof0b")
    st(4)
    a(f"s_branch {name}_epi2")

    a.label(f"{name}_comp")
    sI = 40
    a(f"""
    s_lshl_b32 s{sI}, s{sW}, 8
    s_add_u32 s{sI}, s{sI}, s2
    s_waitcnt lgkmcnt(0)
    """)
    if "notab" not in opts:
        a(f"""
        s_cmp_lg_u32 s{sI}, 1023
        s_cbranch_scc1 {name}_noinit
        v_lshlrev_b32 v{vT[0]}, 2, v0
        v_cmp_le_u32 vcc, 34, v0
        s_mov_b32 s{sT}, {FLG1:#x}
        s_nop 0
        v_cndmask_b32 v{vT[1]}, 0, 1, vcc
        """)
        for g in range(12):
            a(f"buffer_store_dword v{vT[1]}, v{vT[0]}, {WS}, s{sT} offen offset:{g*256}")
        a.label(f"{name}_noinit")
        a.label(f"{name}_tabloop")
        table_item(a, name + "_tab", sI, sT, vT, acc[0][0], WS)
        a(f"""
        s_add_u32 s{sI}, s{sI}, 1024
        s_cmp_lt_u32 s{sI}, 1329
        s_cbranch_scc1 {name}_tabloop
        """)
    a(f"""
    v_and_b32 v{vT[0]}, 31, v0
    v_lshrrev_b32 v{vT[1]}, 5, v0
    v_bfe_u32 v{vT[2]}, v0, 1, 3
    v_xor_b32 v{vT[2]}, v{vT[2]}, v{vT[1]}
    s_and_b32 s{sT}, s{sW}, 1
    s_lshl_b32 s{sT}, s{sT}, 13
    v_lshl_add_u32 v{vT[0]}, v{vT[0]}, 7, s{sT}
    """)
    for ks in range(4):
        a(f"v_xor_b32 v{vT[3]}, {2*ks}, v{vT[2]}")
        a(f"v_lshl_add_u32 v{xr[0][ks]}, v{vT[3]}, 4, v{vT[0]}")
        a(f"v_add_u32 v{xr[1][ks]}, 0x10000, v{xr[0][ks]}")
        a(f"v_add_u32 v{xr[2][ks]}, 0x20000, v{xr[0][ks]}")
    a(f"""
    v_bfe_u32 v{vT[2]}, v0, 2, 2
    v_lshl_add_u32 v{vT[3]}, v{vT[1]}, 3, v{vT[2]}
    v_lshlrev_b32 v{vT[3]}, 8, v{vT[3]}
    v_and_b32 v{vT[4]}, 1, v0
    v_lshl_add_u32 v{vT[3]}, v{vT[4]}, 3, v{vT[3]}
    v_add_u32 v{vT[3]}, 16384, v{vT[3]}
    v_bfe_u32 v{vT[4]}, v0, 4, 1
    v_bfe_u32 v{vT[5]}, v0, 1, 1
    v_lshl_add_u32 v{vT[4]}, v{vT[4]}, 1, v{vT[5]}
    v_lshl_add_u32 v{vT[4]}, v{vT[2]}, 2, v{vT[4]}
    s_lshr_b32 s{sT}, s{sW}, 1
    s_lshl_b32 s{sT}, s{sT}, 3
    v_xor_b32 v{vT[4]}, s{sT}, v{vT[4]}
    v_lshl_add_u32 v{wr[0][0]}, v{vT[4]}, 4, v{vT[3]}
    v_xor_b32 v{vT[4]}, 4, v{vT[4]}
    v_lshl_add_u32 v{wr[0][1]}, v{vT[4]}, 4, v{vT[3]}
    v_add_u32 v{wr[1][0]}, 0x10000, v{wr[0][0]}
    v_add_u32 v{wr[1][1]}, 0x10000, v{wr[0][1]}
    v_add_u32 v{wr[2][0]}, 0x20000, v{wr[0][0]}
    v_add_u32 v{wr[2][1]}, 0x20000, v{wr[0][1]}
    v_and_b32 v{vT[0]}, 31, v0
    v_mul_u32_u24 v{vT[5]}, {T_PITCH}, v{vT[0]}
    v_lshl_add_u32 v{vT[2]}, v{vT[1]}, 3, v{vT[5]}
    s_and_b32 s{sT}, s{sW}, 1
    s_mul_i32 s{sT}, s{sT}, {64*T_PITCH}
    s_lshr_b32 s{sT+1}, s{sW}, 1
    s_lshl_b32 s{sT+2}, s{sT+1}, 7
    s_add_u32 s{sT}, s{sT}, s{sT+2}
    s_add_u32 s{sT}, s{sT}, {T_OFF}
    v_add_u32 v{vT[2]}, s{sT}, v{vT[2]}
    s_mov_b32 s{sT+3}, {f2u(C_SCALE):#x}
    """)
    if "cprio" in opts:
        a("s_setprio 1")

    def reads(c, ks, buf):
        stg = c % NS
        hi, lo = stg >> 1, (stg & 1) * 32768
        for tt in range(2):
            a(f"ds_read_b128 {vr(fx[buf][tt],4)}, v{xr[hi][ks]} offset:{lo + tt*4096}")
        for nt in range(2):
            for r in range(2):
                a(f"ds_read_b64_tr_b16 {vr(fw[buf][nt]+2*r,2)}, v{wr[hi][nt]} offset:{lo + (16*ks + 4*r)*256}")

    def mfmas(buf, first, which):
        for nt, tt in which:
            c = "0" if first else vr(acc[nt][tt], 16)
            a(f"v_mfma_f32_32x32x16_bf16 {vr(acc[nt][tt],16)}, {vr(fw[buf][nt],4)}, {vr(fx[buf][tt],4)}, {c}")

    st(1)
    a("s_barrier")
    st(2)
    if stamp:
        a("s_waitcnt lgkmcnt(0)")
    reads(0, 0, 0)
    step = 0
    for c in range(NC):
        for ks in range(4):
            buf = step & 1
            first = (step == 0)
            last = (c == NC - 1 and ks == 3)
            if not last:
                nc_, nk = (c, ks + 1) if ks < 3 else (c + 1, 0)
                reads(nc_, nk, buf ^ 1)
                a("s_waitcnt lgkmcnt(6)")
            else:
                a("s_waitcnt lgkmcnt(0)")
            mfmas(buf, first, [(0, 0), (0, 1), (1, 0)])
            if ks == 2 and c + 1 < NC:
                a("s_barrier")
            mfmas(buf, first, [(1, 1)])
            step += 1
    st(3)
    a(f"s_cmp_lt_u32 s{sW}, 2")
    a(f"s_cbranch_scc0 {name}_nosc")
    a("s_nop 7")
    for nt in range(2):
        for tt in range(2):
            A = acc[nt][tt]
            for i in range(0, 16 if nt == 0 else 4, 2):
                a(f"v_pk_mul_f32 {vr(A+i,2)}, {vr(A+i,2)}, s[{sT+3}:{sT+4}] op_sel_hi:[1,0]")
    a.label(f"{name}_nosc")
    a("s_nop 7")
    for nt in range(2):
        for tt in range(2):
            A = acc[nt][tt]
            for j in range(4):
                a(f"v_cvt_pk_bf16_f32 v{A+2*j}, v{A+4*j}, v{A+4*j+1}")
                a(f"v_cvt_pk_bf16_f32 v{A+2*j+1}, v{A+4*j+2}, v{A+4*j+3}")
            for j in range(4):
                a(f"ds_write_b64 v{vT[2]}, {vr(A+2*j,2)} offset:{tt*32*T_PITCH + nt*64 + j*16}")
    st(4)
    a.label(f"{name}_epi2")
    B = fx[0][0]
    B = acc[0][0]
    a(f"""
    s_and_b32 s{sT+5}, s{sW}, 3
    s_lshr_b32 s{sT+6}, s{sW}, 2
    v_and_b32 v{vT[0]}, 31, v0
    v_lshrrev_b32 v{vT[1]}, 5, v0
    v_mul_u32_u24 v{vT[5]}, {T_PITCH}, v{vT[0]}
    s_mul_i32 s{sT}, s{sT+5}, {32*T_PITCH}
    s_add_u32 s{sT}, s{sT}, {T_OFF}
    s_mul_i32 s{sT+1}, s{sT+6}, 48
    s_add_u32 s{sT+1}, s{sT+1}, s{sT}
    s_lshl_b32 s{sT+2}, s{sT+6}, 3
    s_add_u32 s{sT+2}, s{sT+2}, s{sT}
    s_mul_i32 s{sT+3}, s{sT+6}, 40
    s_add_u32 s{sT+3}, s{sT+3}, s{sT}
    v_lshl_add_u32 v{vT[3]}, v{vT[1]}, 4, v{vT[5]}
    v_add_u32 v{vT[3]}, s{sT+1}, v{vT[3]}
    v_add_u32 v{vT[5]}, s{sT+2}, v{vT[5]}
    v_bfe_u32 v{vT[4]}, v0, 2, 2
    v_lshl_add_u32 v{vT[4]}, v{vT[1]}, 2, v{vT[4]}
    v_mul_u32_u24 v{vT[4]}, {T_PITCH}, v{vT[4]}
    v_bfe_u32 v{vT[6]}, v0, 4, 1
    v_lshl_add_u32 v{vT[4]}, v{vT[6]}, 5, v{vT[4]}
    v_and_b32 v{vT[6]}, 3, v0
    v_lshl_add_u32 v{vT[4]}, v{vT[6]}, 3, v{vT[4]}
    v_add_u32 v{vT[4]}, s{sT+3}, v{vT[4]}
    v_lshlrev_b32 v{xv[0]}, 4, v0
    v_lshlrev_b32 v{xv[1]}, 3, v0
    v_mov_b32 v{vT[7]}, {OOB:#x}
    v_cmp_gt_u32 vcc, 32, v0
    v_cmp_eq_u32 s[32:33], 20, v{vT[0]}
    v_cmp_gt_u32 s[34:35], 21, v{vT[0]}
    v_cndmask_b32 v{xv[2]}, v{vT[7]}, v{xv[1]}, vcc
    v_mul_u32_u24 v{vT[1]}, 21, v{vT[1]}
    v_add_u32 v{vT[1]}, v{vT[1]}, v{vT[0]}
    v_lshlrev_b32 v{vT[1]}, 4, v{vT[1]}
    v_cndmask_b32 v{xv[3]}, v{vT[7]}, v{vT[1]}, s[34:35]
    v_mov_b32 v{vT[6]}, 0x3f803f80
    v_mov_b32 v{vT[7]}, 0
    s_lshl_b32 s{sT}, s{sRB}, 2
    s_add_u32 s{sT}, s{sT}, s{sT+5}
    s_lshl_b32 s{sT+1}, s{sHP}, 1
    s_add_u32 s{sT+1}, s{sT+1}, s{sT+6}
    s_lshl_b32 s{sT+1}, s{sT+1}, 6
    s_add_u32 s{sT}, s{sT}, s{sT+1}
    s_mul_i32 s{sT+1}, s{sT}, {Q_TILE}
    s_add_u32 s{sT+1}, s{sT+1}, {QF:#x}
    s_mul_i32 s{sT+2}, s{sT}, {KV_TILE}
    s_add_u32 s{sT+2}, s{sT+2}, {KVF:#x}
    s_waitcnt lgkmcnt(0)
    s_barrier
    ds_read_b128 {vr(B,4)}, v{vT[3]} offset:80
    ds_read_b64 {vr(B+4,2)}, v{vT[5]} offset:112
    """)
    for g in range(2):
        for r in range(2):
            a(f"ds_read_b64_tr_b16 {vr(B+8+4*g+2*r,2)}, v{vT[4]} offset:{160 + (16*g + 8*r)*T_PITCH}")
    a(f"ds_read_b128 {vr(B+16,4)}, v{vT[3]}")
    a(f"ds_read_b64 {vr(B+6,2)}, v{vT[5]} offset:32")
    sq, sk = sT + 1, sT + 2
    a(f"s_waitcnt lgkmcnt(6)")
    a(f"buffer_store_dwordx4 {vr(B,4)}, v{xv[0]}, {WS}, s{sk} offen")
    a(f"v_cndmask_b32 v{B+4}, v{vT[6]}, v{B+4}, vcc")
    a(f"v_cndmask_b32 v{B+5}, v{vT[7]}, v{B+5}, vcc")
    a(f"buffer_store_dwordx2 {vr(B+4,2)}, v{xv[1]}, {WS}, s{sk} offen offset:1024")
    a(f"s_waitcnt lgkmcnt(2)")
    for i in range(8):
        a(f"v_cndmask_b32 v{B+8+i}, v{B+8+i}, v{vT[6]}, s[32:33]")
    a(f"buffer_store_dwordx4 {vr(B+8,4)}, v{xv[3]}, {WS}, s{sk} offen offset:1536")
    a(f"buffer_store_dwordx4 {vr(B+12,4)}, v{xv[3]}, {WS}, s{sk} offen offset:{1536+672}")
    a(f"s_waitcnt lgkmcnt(0)")
    a(f"buffer_store_dwordx4 {vr(B+16,4)}, v{xv[0]}, {WS}, s{sq} offen")
    a(f"buffer_store_dwordx2 {vr(B+6,2)}, v{xv[2]}, {WS}, s{sq} offen offset:1024")
    if stamp:
        a(f"""
        s_waitcnt vmcnt(0)
        s_memrealtime s[70:71]
        s_waitcnt lgkmcnt(0)
        s_lshl_b32 s54, s2, 3
        s_add_u32 s54, s54, s{sW}
        s_lshl_b32 s54, s54, 5
        s_add_u32 s54, s54, {STAMP + 0x60000:#x}
        v_mov_b32 v{vT[0]}, 0
        s_mov_b64 exec, 1
        """)
        for i in range(6):
            a(f"v_mov_b32 v{vT[1]}, s{60+2*i}")
            a(f"buffer_store_dword v{vT[1]}, v{vT[0]}, {WS}, s54 offen offset:{4*i}")
    a.label(f"{name}_end")
    a("s_endpgm")
    return v.hi
```

```python
from asmlib import *
from layout import *
from k_attn import kernel_header
from k_qkv2 import table_item, f2u, C_SCALE

NS = 5
QKV3_LDS = NS * 32768
OOB = 0x80000000


def gen_qkv3(a, name="qkv_kernel", stamp=False, opts=()):
    kernel_header(a, name)
    v = RegAlloc(1, 256)
    vT = [v.alloc() for _ in range(8)]
    xv = [v.alloc() for _ in range(4)]
    wv = [v.alloc() for _ in range(4)]
    xr = [[v.alloc() for _ in range(4)] for _ in range(3)]
    wr = [[v.alloc() for _ in range(2)] for _ in range(3)]
    acc = [[v.alloc(16, 4) for _ in range(2)] for _ in range(2)]
    fx = [[v.alloc(4, 4) for _ in range(2)] for _ in range(2)]
    fw = [[v.alloc(4, 4) for _ in range(2)] for _ in range(2)]
    sW = 3; sX = 20; sWo = 21; sM = 22; sT = 23; sCB = 30; sRB = 31; sJ = 36; sRot = 37; sF0 = 38; sXF = 39; sI = 40; sScale = 42
    WS = "s[12:15]"
    ST = " sc0 sc1" if "wt" in opts else " nt" if "nt" in opts else ""
    NC = 10
    def st(i):
        if stamp:
            a(f"s_memrealtime s[{60+2*i}:{61+2*i}]")
    a(f"""
    s_cmp_ge_u32 s2, 256
    s_cbranch_scc1 {name}_end
    """)
    st(0)
    a(f"""
    s_load_dwordx4 s[16:19], s[0:1], 0
    s_load_dwordx2 s[12:13], s[0:1], 80
    s_load_dwordx2 s[44:45], s[0:1], 24
    v_lshrrev_b32 v{vT[0]}, 6, v0
    v_and_b32 v0, 63, v0
    v_readfirstlane_b32 s{sW}, v{vT[0]}
    s_and_b32 s{sT}, s2, 7
    s_lshr_b32 s{sT+1}, s2, 3
    s_lshr_b32 s{sRB}, s{sT}, 1
    s_lshl_b32 s{sRB}, s{sRB}, 2
    s_and_b32 s{sT+2}, s{sT+1}, 3
    s_add_u32 s{sRB}, s{sRB}, s{sT+2}
    s_and_b32 s{sCB}, s{sT}, 1
    s_lshl_b32 s{sCB}, s{sCB}, 3
    s_lshr_b32 s{sT+3}, s{sT+1}, 2
    s_add_u32 s{sCB}, s{sCB}, s{sT+3}
    s_mov_b32 s14, {WS_BYTES:#x}
    s_mov_b32 s15, 0x00020000
    s_cmp_lt_u32 s{sW}, 4
    s_cbranch_scc1 {name}_comp
    """)
    if "lprio" in opts:
        a("s_setprio 3")
    a(f"""
    s_sub_u32 s{sJ}, s{sW}, 4
    s_lshl_b32 s{sF0}, s{sJ}, 5
    s_add_u32 s{sF0}, s{sF0}, s{sT+1}
    s_mul_i32 s{sT+4}, s{sT}, 43
    s_cmp_ge_u32 s{sF0}, 43
    s_cselect_b32 s{sT+5}, 0x4000, 0
    s_add_u32 s{sF0}, s{sF0}, s{sT+4}
    s_add_u32 s{sF0}, s{sF0}, s{sT+5}
    s_mul_i32 s{sRot}, s{sT+2}, 3
    s_add_u32 s{sRot}, s{sRot}, s{sT+3}
    s_cmp_ge_u32 s{sRot}, 10
    s_cselect_b32 s{sT+4}, 10, 0
    s_sub_u32 s{sRot}, s{sRot}, s{sT+4}
    s_mov_b32 s6, {2048*1280}
    s_mov_b32 s7, 0x00020000
    s_mov_b32 s10, {640*3840}
    s_mov_b32 s11, 0x00020000
    s_lshl_b32 s{sX}, s{sRB}, 2
    s_add_u32 s{sX}, s{sX}, s{sJ}
    s_mul_i32 s{sX}, s{sX}, {32*1280}
    s_mul_i32 s{sWo}, s{sJ}, {16*3840}
    s_lshl_b32 s{sT}, s{sCB}, 8
    s_add_u32 s{sWo}, s{sWo}, s{sT}
    s_lshl_b32 s{sM}, s{sJ}, 12
    s_lshl_b32 s{sT}, s{sRot}, 7
    s_add_u32 s{sX}, s{sX}, s{sT}
    s_mul_i32 s{sT}, s{sRot}, {64*3840}
    s_add_u32 s{sWo}, s{sWo}, s{sT}
    v_lshrrev_b32 v{vT[0]}, 3, v0
    v_mul_u32_u24 v{vT[0]}, 1280, v{vT[0]}
    v_lshrrev_b32 v{vT[1]}, 4, v0
    v_and_b32 v{vT[2]}, 7, v0
    v_xor_b32 v{vT[3]}, v{vT[2]}, v{vT[1]}
    v_xor_b32 v{vT[4]}, 4, v{vT[3]}
    v_lshl_add_u32 v{xv[0]}, v{vT[3]}, 4, v{vT[0]}
    v_lshl_add_u32 v{xv[1]}, v{vT[4]}, 4, v{vT[0]}
    v_add_u32 v{xv[2]}, {2*(10240-1024)}, v{xv[0]}
    v_add_u32 v{xv[3]}, {3*(10240-1024)}, v{xv[1]}
    v_add_u32 v{xv[1]}, {10240-1024}, v{xv[1]}
    v_and_b32 v{vT[2]}, 15, v0
    v_lshlrev_b32 v{vT[3]}, 2, v{vT[1]}
    v_xor_b32 v{vT[2]}, v{vT[2]}, v{vT[3]}
    v_mul_u32_u24 v{vT[1]}, 3840, v{vT[1]}
    v_lshl_add_u32 v{wv[0]}, v{vT[2]}, 4, v{vT[1]}
    v_add_u32 v{wv[1]}, {14336}, v{wv[0]}
    v_add_u32 v{wv[2]}, {2*14336}, v{wv[0]}
    v_add_u32 v{wv[3]}, {3*14336}, v{wv[0]}
    s_waitcnt lgkmcnt(0)
    s_mov_b32 s4, s16
    s_mov_b32 s5, s17
    s_mov_b32 s8, s18
    s_mov_b32 s9, s19
    s_cmp_ge_u32 s{sCB}, 15
    s_cbranch_scc1 {name}_idle_l
    """)

    def dma(c):
        stg = (c % NS) * 32768
        a(f"s_add_u32 m0, s{sM}, {stg}")
        a(f"s_add_u32 s{sRot}, s{sRot}, 1")
        for i in range(4):
            a(f"buffer_load_dwordx4 v{xv[i]}, s[4:7], s{sX} offen offset:{1024*i} lds")
        a(f"s_add_u32 m0, s{sM}, {stg + 16384}")
        a(f"s_cmp_eq_u32 s{sRot}, 10")
        for i in range(4):
            a(f"buffer_load_dwordx4 v{wv[i]}, s[8:11], s{sWo} offen offset:{1024*i} lds")
        a(f"""
        s_cselect_b32 s{sT}, -9, 1
        s_mul_i32 s{sT+1}, s{sT}, {64*3840}
        s_lshl_b32 s{sT}, s{sT}, 7
        s_add_u32 s{sX}, s{sX}, s{sT}
        s_add_u32 s{sWo}, s{sWo}, s{sT+1}
        """)

    A0 = acc[0][0]
    X = [[A0 + 8 * i + 4 * hf for hf in range(2)] for i in range(4)]
    zb = A0 + 32
    z = [zb + 2 * i for i in range(16)]
    Y = [fx[0][0] + 4 * m for m in range(8)]
    off = [xr[0][i] for i in range(4)]

    def f0_loads(tag):
        a(f"""
        s_cmp_ge_u32 s{sF0}, 340
        s_cbranch_scc1 {name}_nof0a{tag}
        s_mov_b32 s46, {2048*1280}
        s_mov_b32 s47, 0x00020000
        s_mul_i32 s{sT}, s{sF0}, 3277
        s_lshr_b32 s{sT}, s{sT}, 16
        s_mul_i32 s{sT+1}, s{sT}, 20
        s_sub_u32 s{sT+1}, s{sF0}, s{sT+1}
        v_and_b32 v{vT[0]}, 19, v0
        v_lshrrev_b32 v{vT[1]}, 1, v0
        v_and_b32 v{vT[1]}, 4, v{vT[1]}
        v_lshlrev_b32 v{vT[2]}, 1, v0
        v_and_b32 v{vT[2]}, 8, v{vT[2]}
        v_or3_b32 v{vT[0]}, v{vT[0]}, v{vT[1]}, v{vT[2]}
        s_lshl_b32 s{sT+2}, s{sT}, 5
        v_add_u32 v{vT[0]}, s{sT+2}, v{vT[0]}
        v_lshrrev_b32 v{vT[1]}, 5, v0
        v_lshlrev_b32 v{vT[1]}, 4, v{vT[1]}
        v_mul_u32_u24 v{vT[2]}, 1280, v{vT[0]}
        v_add_u32 v{off[0]}, v{vT[2]}, v{vT[1]}
        v_sub_u32 v{off[1]}, v{vT[1]}, v{vT[2]}
        v_add_u32 v{off[2]}, {1024*1280}, v{off[1]}
        v_add_u32 v{off[1]}, {2048*1280}, v{off[1]}
        v_add_u32 v{off[3]}, {1024*1280}, v{off[0]}
        v_mov_b32 v{vT[3]}, {OOB:#x}
        v_cmp_lt_u32 vcc, 512, v{vT[0]}
        s_lshl_b32 s{sT+2}, s{sT+1}, 5
        s_lshl_b32 s{sXF}, s{sF0}, 10
        v_cndmask_b32 v{off[0]}, v{off[0]}, v{vT[3]}, vcc
        v_cndmask_b32 v{off[1]}, v{off[1]}, v{vT[3]}, vcc
        v_cmp_lt_u32 vcc, 511, v{vT[0]}
        s_add_u32 s{sXF}, s{sXF}, {XF:#x}
        s_nop 0
        v_cndmask_b32 v{off[2]}, v{off[2]}, v{vT[3]}, vcc
        v_cndmask_b32 v{off[3]}, v{off[3]}, v{vT[3]}, vcc
        v_cmp_eq_u32 vcc, 0, v{vT[0]}
        s_nop 1
        v_cndmask_b32 v{off[3]}, v{off[3]}, v{vT[3]}, vcc
        """)
        for i in range(4):
            for hf in range(2):
                a(f"buffer_load_dwordx4 {vr(X[i][hf],4)}, v{off[i]}, s[44:47], s{sT+2} offen offset:{640*hf}")
        a.label(f"{name}_nof0a{tag}")

    after = {-1: [0, 1], 0: [2], 1: [3], 2: [4, 5], 3: [6], 4: [7], 5: [8], 6: [9]}
    if "sched3" in opts:
        after = {-1: [0, 1, 2], 0: [3], 1: [4], 2: [5], 3: [6], 4: [7], 5: [8], 6: [9]}
    if "sched2" in opts:
        after = {-1: [0, 1], 0: [2, 3], 1: [4], 2: [5], 3: [6], 4: [7], 5: [8], 6: [9]}
    f0_after = 6
    for o in opts:
        if o.startswith("f0at"): f0_after = int(o[4:])
    issued = []
    for c in after[-1]:
        dma(c); issued.append(c)
    f0_upto = None
    for c in range(NC):
        later = len([x for x in issued if x > c])
        n = 8 * later
        if f0_upto is not None and c <= f0_upto:
            a(f"s_cmp_ge_u32 s{sF0}, 340")
            a(f"s_cbranch_scc1 {name}_w{c}a")
            a(f"s_waitcnt vmcnt({n + 8})")
            a(f"s_branch {name}_w{c}b")
            a.label(f"{name}_w{c}a")
            a(f"s_waitcnt vmcnt({n})")
            a.label(f"{name}_w{c}b")
        else:
            a(f"s_waitcnt vmcnt({n})")
        if c in (0, 3, 9): st(1 + (0, 3, 9).index(c))
        a("s_barrier")
        for x in after.get(c, []):
            dma(x); issued.append(x)
        if c == f0_after:
            f0_loads("")
            f0_upto = max(issued)
    a(f"s_branch {name}_f0c")
    a.label(f"{name}_idle_l")
    f0_loads("i")
    a.label(f"{name}_f0c")
    if "lprio" in opts:
        a("s_setprio 0")
    a(f"""
    s_cmp_ge_u32 s{sF0}, 340
    s_cbranch_scc1 {name}_fin
    s_waitcnt vmcnt(0)
    v_lshlrev_b32 v{vT[0]}, 4, v0
    """)
    def pk(op, d, x, y):
        neg = " neg_lo:[0,1] neg_hi:[0,1]" if op == "-" else ""
        a(f"v_pk_add_f32 {vr(d,2)}, {vr(x,2)}, {vr(y,2)}{neg}")
    for dw in range(4):
        for i in range(4):
            for hf in range(2):
                d = z[2 * i + hf]
                a(f"v_lshlrev_b32 v{d}, 16, v{X[i][hf]+dw}")
                a(f"v_and_b32 v{d+1}, 0xffff0000, v{X[i][hf]+dw}")
        for i in range(4):
            pk("+", z[8 + 2 * i], z[2 * i], z[2 * i + 1])
            pk("-", z[8 + 2 * i + 1], z[2 * i], z[2 * i + 1])
        for p in range(2):
            pk("+", z[4 * p + 0], z[8 + p], z[10 + p])
            pk("+", z[4 * p + 1], z[12 + p], z[14 + p])
            pk("-", z[4 * p + 2], z[8 + p], z[10 + p])
            pk("-", z[4 * p + 3], z[12 + p], z[14 + p])
        for p in range(2):
            pk("+", z[8 + 0 + p], z[4 * p], z[4 * p + 1])
            pk("-", z[8 + 2 + p], z[4 * p], z[4 * p + 1])
            pk("-", z[8 + 4 + p], z[4 * p + 2], z[4 * p + 3])
            pk("+", z[8 + 6 + p], z[4 * p + 2], z[4 * p + 3])
        for m in range(8):
            a(f"v_cvt_pk_bf16_f32 v{Y[m]+dw}, v{z[8+m]}, v{z[8+m]+1}")
    for m in range(8):
        a(f"buffer_store_dwordx4 {vr(Y[m],4)}, v{vT[0]}, {WS}, s{sXF} offen{ST}")
        if m < 7:
            a(f"s_add_u32 s{sXF}, s{sXF}, {340*1024}")
    st(4)
    a(f"s_branch {name}_fin")

    a.label(f"{name}_comp")
    a(f"""
    s_lshl_b32 s{sI}, s{sW}, 8
    s_add_u32 s{sI}, s{sI}, s2
    s_waitcnt lgkmcnt(0)
    s_cmp_lg_u32 s{sI}, 1023
    s_cbranch_scc1 {name}_noinit
    v_lshlrev_b32 v{vT[0]}, 2, v0
    v_cmp_le_u32 vcc, 34, v0
    s_mov_b32 s{sT}, {FLG1:#x}
    s_nop 0
    v_cndmask_b32 v{vT[1]}, 0, 1, vcc
    """)
    for g in range(12):
        a(f"buffer_store_dword v{vT[1]}, v{vT[0]}, {WS}, s{sT} offen offset:{g*256}")
    a.label(f"{name}_noinit")
    a(f"""
    s_sub_u32 s{sT}, s{sI}, 512
    s_cmp_ge_u32 s{sT}, 128
    s_cbranch_scc1 {name}_noones
    v_lshrrev_b32 v{vT[0]}, 3, v0
    v_mul_u32_u24 v{vT[0]}, {KV_BLK}, v{vT[0]}
    v_and_b32 v{vT[1]}, 7, v0
    v_mul_u32_u24 v{vT[1]}, 336, v{vT[1]}
    v_add_u32 v{vT[0]}, v{vT[0]}, v{vT[1]}
    s_mul_i32 s{sT}, s{sT}, {8*KV_BLK}
    s_add_u32 s{sT}, s{sT}, {KVF + 2560 + 320:#x}
    v_mov_b32 v{fx[0][0]}, 0x3f803f80
    v_mov_b32 v{fx[0][0]+1}, 0x3f803f80
    v_mov_b32 v{fx[0][0]+2}, 0x3f803f80
    v_mov_b32 v{fx[0][0]+3}, 0x3f803f80
    buffer_store_dwordx4 {vr(fx[0][0],4)}, v{vT[0]}, {WS}, s{sT} offen
    """)
    a.label(f"{name}_noones")
    a.label(f"{name}_tabloop")
    table_item(a, name + "_tab", sI, sT, vT, acc[0][0], WS)
    a(f"""
    s_add_u32 s{sI}, s{sI}, 1024
    s_cmp_lt_u32 s{sI}, 1329
    s_cbranch_scc1 {name}_tabloop
    s_cmp_ge_u32 s{sCB}, 15
    s_cbranch_scc1 {name}_fin
    v_and_b32 v{vT[0]}, 31, v0
    v_lshrrev_b32 v{vT[1]}, 5, v0
    v_bfe_u32 v{vT[2]}, v0, 1, 3
    v_xor_b32 v{vT[2]}, v{vT[2]}, v{vT[1]}
    s_and_b32 s{sT}, s{sW}, 1
    s_lshl_b32 s{sT}, s{sT}, 13
    v_lshl_add_u32 v{vT[3]}, v{vT[0]}, 7, s{sT}
    """)
    for ks in range(4):
        a(f"v_xor_b32 v{vT[4]}, {2*ks}, v{vT[2]}")
        a(f"v_lshl_add_u32 v{xr[0][ks]}, v{vT[4]}, 4, v{vT[3]}")
        a(f"v_add_u32 v{xr[1][ks]}, 0x10000, v{xr[0][ks]}")
        a(f"v_add_u32 v{xr[2][ks]}, 0x20000, v{xr[0][ks]}")
    a(f"""
    v_and_b32 v{vT[4]}, 1, v0
    v_bfe_u32 v{vT[5]}, v0, 1, 1
    s_cmp_ge_u32 s{sCB}, 10
    s_cselect_b64 vcc, -1, 0
    v_bfe_u32 v{vT[2]}, v0, 2, 2
    v_lshl_add_u32 v{vT[3]}, v{vT[1]}, 3, v{vT[2]}
    v_cndmask_b32 v{vT[6]}, v{vT[5]}, v{vT[4]}, vcc
    v_cndmask_b32 v{vT[5]}, v{vT[4]}, v{vT[5]}, vcc
    v_lshlrev_b32 v{vT[3]}, 8, v{vT[3]}
    v_lshl_add_u32 v{vT[3]}, v{vT[6]}, 3, v{vT[3]}
    v_add_u32 v{vT[3]}, 16384, v{vT[3]}
    v_bfe_u32 v{vT[4]}, v0, 4, 1
    v_lshl_add_u32 v{vT[4]}, v{vT[4]}, 1, v{vT[5]}
    v_lshl_add_u32 v{vT[4]}, v{vT[2]}, 2, v{vT[4]}
    s_lshr_b32 s{sT}, s{sW}, 1
    s_lshl_b32 s{sT+1}, s{sT}, 3
    v_xor_b32 v{vT[4]}, s{sT+1}, v{vT[4]}
    v_lshl_add_u32 v{wr[0][0]}, v{vT[4]}, 4, v{vT[3]}
    v_xor_b32 v{vT[4]}, 4, v{vT[4]}
    v_lshl_add_u32 v{wr[0][1]}, v{vT[4]}, 4, v{vT[3]}
    v_add_u32 v{wr[1][0]}, 0x10000, v{wr[0][0]}
    v_add_u32 v{wr[1][1]}, 0x10000, v{wr[0][1]}
    v_add_u32 v{wr[2][0]}, 0x20000, v{wr[0][0]}
    v_add_u32 v{wr[2][1]}, 0x20000, v{wr[0][1]}
    s_and_b32 s{sT+2}, s{sW}, 1
    s_lshl_b32 s{sT+3}, s{sRB}, 1
    s_add_u32 s{sT+2}, s{sT+2}, s{sT+3}
    s_lshl_b32 s{sT+2}, s{sT+2}, 1
    s_cmp_ge_u32 s{sCB}, 10
    s_cbranch_scc1 {name}_vset
    s_cmp_ge_u32 s{sCB}, 5
    s_cselect_b32 s{sT+3}, 5, 0
    s_mov_b32 s{sT+4}, {Q_BLK}
    s_cselect_b32 s{sT+4}, {KV_BLK}, s{sT+4}
    s_cselect_b32 s{sX}, {KVF:#x}, {QF}
    s_mov_b32 s{sScale}, {f2u(C_SCALE):#x}
    s_sub_u32 s{sT+3}, s{sCB}, s{sT+3}
    s_mul_i32 s{sT+2}, s{sT+2}, s{sT+4}
    s_add_u32 s{sX}, s{sX}, s{sT+2}
    s_add_u32 s{sWo}, s{sX}, s{sT+4}
    s_lshl_b32 s{sT+4}, s{sT+4}, 6
    s_lshl_b32 s{sT+3}, s{sT+3}, 4
    s_add_u32 s{sT+3}, s{sT+3}, s{sT+1}
    v_add_u32 v{vT[2]}, s{sT+3}, v{vT[1]}
    """)
    for nt in range(2):
        for jj in range(2):
            d = xv[2 * nt + jj]
            a(f"""
            v_add_u32 v{vT[3]}, {4*nt + 2*jj}, v{vT[2]}
            v_mul_u32_u24 v{vT[4]}, 205, v{vT[3]}
            v_lshrrev_b32 v{vT[4]}, 10, v{vT[4]}
            v_mul_u32_u24 v{vT[5]}, 5, v{vT[4]}
            v_sub_u32 v{vT[5]}, v{vT[3]}, v{vT[5]}
            v_cmp_lt_u32 vcc, 2, v{vT[5]}
            v_mul_lo_u32 v{vT[4]}, v{vT[4]}, s{sT+4}
            v_lshl_add_u32 v{vT[4]}, v{vT[0]}, 4, v{vT[4]}
            v_subb_co_u32 v{vT[6]}, vcc, v{vT[5]}, 0, vcc
            v_cmp_eq_u32 vcc, 2, v{vT[5]}
            s_nop 1
            v_cndmask_b32 v{vT[6]}, v{vT[6]}, 4, vcc
            v_lshl_add_u32 v{d}, v{vT[6]}, 9, v{vT[4]}
            """)

    def reads(c, ks, buf, ret=False):
        stg = c % NS
        hi, lo = stg >> 1, (stg & 1) * 32768
        L = []
        for tt in range(2):
            L.append(f"ds_read_b128 {vr(fx[buf][tt],4)}, v{xr[hi][ks]} offset:{lo + tt*4096}")
        for nt in range(2):
            for r in range(2):
                L.append(f"ds_read_b64_tr_b16 {vr(fw[buf][nt]+2*r,2)}, v{wr[hi][nt]} offset:{lo + (16*ks + 4*r)*256}")
        if ret:
            return L
        for l in L: a(l)

    def mainloop(vmode):
        def mfmas(buf, first, which):
            for nt, tt in which:
                c = "0" if first else vr(acc[nt][tt], 16)
                A_, B_ = (fx[buf][tt], fw[buf][nt]) if vmode else (fw[buf][nt], fx[buf][tt])
                a(f"v_mfma_f32_32x32x16_bf16 {vr(acc[nt][tt],16)}, {vr(A_,4)}, {vr(B_,4)}, {c}")
        if "cprio" in opts:
            a("s_setprio 1")
        st(1)
        a("s_barrier")
        st(2)
        if stamp:
            a("s_memtime s[72:73]")
            a("s_waitcnt lgkmcnt(0)")
        reads(0, 0, 0)
        step = 0
        for c in range(NC):
            for ks in range(4):
                buf = step & 1
                first = (step == 0)
                last = (c == NC - 1 and ks == 3)
                rd = []
                if not last:
                    nc_, nk = (c, ks + 1) if ks < 3 else (c + 1, 0)
                    rd = reads(nc_, nk, buf ^ 1, True)
                a("s_waitcnt lgkmcnt(0)")
                mfmas(buf, first, [(0, 0)])
                for l in rd[0:2]: a(l)
                mfmas(buf, first, [(0, 1)])
                for l in rd[2:4]: a(l)
                mfmas(buf, first, [(1, 0)])
                for l in rd[4:6]: a(l)
                if ks == 2 and c + 1 < NC:
                    a("s_barrier")
                mfmas(buf, first, [(1, 1)])
                step += 1
        st(3)
        if stamp:
            a("s_memtime s[74:75]")

    mainloop(False)
    a(f"s_cmp_ge_u32 s{sCB}, 5")
    a(f"s_cbranch_scc1 {name}_nosc")
    a("s_nop 7")
    for nt in range(2):
        for tt in range(2):
            A = acc[nt][tt]
            for i in range(0, 16, 2):
                a(f"v_pk_mul_f32 {vr(A+i,2)}, {vr(A+i,2)}, s[{sScale}:{sScale+1}] op_sel_hi:[1,0]")
    a.label(f"{name}_nosc")
    a("s_nop 7")
    for nt in range(2):
        for tt in range(2):
            A = acc[nt][tt]
            for i in range(8):
                a(f"v_cvt_pk_bf16_f32 v{A+i}, v{A+2*i}, v{A+2*i+1}")
            for jj in range(2):
                a(f"buffer_store_dwordx4 {vr(A+4*jj,4)}, v{xv[2*nt+jj]}, {WS}, s{sX if tt == 0 else sWo} offen{ST}")
    st(4)
    a(f"s_branch {name}_fin")
    a.label(f"{name}_vset")
    a(f"""
    s_mul_i32 s{sT+2}, s{sT+2}, {KV_BLK}
    s_add_u32 s{sX}, s{sT+2}, {KVF + 2560:#x}
    s_add_u32 s{sWo}, s{sX}, {KV_BLK}
    s_sub_u32 s{sT+3}, s{sCB}, 10
    s_lshl_b32 s{sT+3}, s{sT+3}, 7
    s_lshl_b32 s{sT+4}, s{sT}, 6
    s_add_u32 s{sT+3}, s{sT+3}, s{sT+4}
    s_mov_b32 s{sT+4}, {64*KV_BLK}
    v_mul_u32_u24 v{vT[1]}, 21, v{vT[1]}
    """)
    for nt in range(2):
        a(f"""
        s_add_u32 s{sT+5}, s{sT+3}, {32*nt}
        v_add_u32 v{vT[3]}, s{sT+5}, v{vT[0]}
        v_mul_u32_u24 v{vT[4]}, 3277, v{vT[3]}
        v_lshrrev_b32 v{vT[4]}, 16, v{vT[4]}
        v_mul_u32_u24 v{vT[5]}, 20, v{vT[4]}
        v_sub_u32 v{vT[5]}, v{vT[3]}, v{vT[5]}
        v_add_u32 v{vT[5]}, v{vT[5]}, v{vT[1]}
        v_and_b32 v{vT[6]}, 1, v{vT[4]}
        v_mul_u32_u24 v{vT[6]}, 1344, v{vT[6]}
        v_lshl_add_u32 v{vT[5]}, v{vT[5]}, 4, v{vT[6]}
        v_lshrrev_b32 v{vT[4]}, 1, v{vT[4]}
        v_mul_lo_u32 v{vT[4]}, v{vT[4]}, s{sT+4}
        v_add_u32 v{xv[nt]}, v{vT[4]}, v{vT[5]}
        """)
    mainloop(True)
    a("s_nop 7")
    for nt in range(2):
        for tt in range(2):
            A = acc[nt][tt]
            for i in range(8):
                a(f"v_cvt_pk_bf16_f32 v{A+i}, v{A+2*i}, v{A+2*i+1}")
            for g in range(2):
                a(f"buffer_store_dwordx4 {vr(A+4*g,4)}, v{xv[nt]}, {WS}, s{sX if tt == 0 else sWo} offen offset:{672*g}{ST}")
    st(4)
    a.label(f"{name}_fin")
    if stamp:
        a(f"""
        s_waitcnt vmcnt(0)
        s_memrealtime s[70:71]
        s_waitcnt lgkmcnt(0)
        s_lshl_b32 s54, s2, 3
        s_add_u32 s54, s54, s{sW}
        s_lshl_b32 s54, s54, 5
        s_add_u32 s54, s54, {STAMP + 0x60000:#x}
        v_mov_b32 v{vT[0]}, 0
        s_mov_b64 exec, 1
        """)
        a("s_sub_u32 s72, s74, s72")
        for i in range(7):
            a(f"v_mov_b32 v{vT[1]}, s{60+2*i}")
            a(f"buffer_store_dword v{vT[1]}, v{vT[0]}, {WS}, s54 offen offset:{4*i}")
    a.label(f"{name}_end")
    a("s_endpgm")
    return v.hi
```

```python
import sys
from asmlib import *
from layout import *
import k_attn, k_out, k_qkv3, k_help2

def build(which):
    a = Asm()
    hdr = []
    foot = []
    a.raw('.amdgcn_target "amdgcn-amd-amdhsa--gfx950"')
    a.raw(".text")
    if "qkv3" in which:
        n = k_qkv3.gen_qkv3(a, "qkv_kernel", stamp=("stamp" in which), opts=which)
        hdr.append(f"; @launch kernel=qkv_kernel grid=(256,1,1) block=(512,1,1) lds={k_qkv3.QKV3_LDS}")
        foot.append(k_attn.kernel_footer("qkv_kernel", n))
    if "attn" in which:
        n = k_attn.gen_attn(a, "attn_kernel", stamp=("stamp" in which), vzero=("vzero" in which), offs=(100.0 if "off100" in which else 80.0 if "off80" in which else 48.0), abl=tuple(w for w in which if w in ("noqk","nopv","noexp","nocvt","nopfill","noqk2")), helper=("help" in which), opts=which, D=(8 if "D8" in which else 4), U=(8 if ("D8" in which or "U8" in which) else 4))
        if "help" in which:
            hdr.append(f"; @launch kernel=attn_kernel grid=(256,1,1) block=(512,1,1) lds={k_help2.HELP_LDS}")
        else:
            hdr.append(f"; @launch kernel=attn_kernel grid=(256,1,1) block=(256,1,1) lds={k_attn.ATT_LDS_SIZE}")
        foot.append(k_attn.kernel_footer("attn_kernel", n))
    if "out" in which:
        n = k_out.gen_out(a, "out_kernel", stamp=("stamp" in which), opts=which)
        hdr.append(f"; @launch kernel=out_kernel grid=(256,1,1) block=(256,1,1) lds={k_out.OUT_LDS}")
        foot.append(k_attn.kernel_footer("out_kernel", n))
    ne = sum(1 for w in which if w == "empty")
    if ne:
        k_attn.kernel_header(a, "empty_kernel"); a("s_endpgm")
        hdr += ["; @launch kernel=empty_kernel grid=(256,1,1) block=(256,1,1) lds=0"] * ne
        foot.append(k_attn.kernel_footer("empty_kernel", 8))
    if "dupqkv" in which:
        hdr.insert(1, hdr[0])
    if "dupattn" in which:
        hdr.insert(2, hdr[1])
    if "dupout" in which:
        hdr.insert(3, hdr[2])
    if "dupf" in which:
        hdr += hdr[3:6]
    body = a.text()
    probs = check_hazards(body)
    for p in probs: print(p, file=sys.stderr)
    txt = "\n".join(hdr) + "\n" + body + '.section .rodata,"a"\n' + "".join(".p2align 6\n" + f for f in foot)
    return txt, len(probs)

if __name__ == "__main__":
    txt, n = build(sys.argv[2].split(","))
    open(sys.argv[1], "w").write(txt)
    print("hazards:", n)
```
